```python
import torch

def _softmax(x, axis=-1):
    return torch.softmax(x, dim=axis)
def _gelu(x):
    return torch.nn.functional.gelu(x, approximate="tanh")
def _silu(x):
    return torch.nn.functional.silu(x)
def _sigmoid(x):
    return torch.sigmoid(x)
def _layernorm(x, axis=-1, eps=1e-5):
    m = x.mean(dim=axis, keepdim=True)
    v = x.var(dim=axis, keepdim=True, unbiased=False)
    return (x - m) / torch.sqrt(v + eps)
def _scatter_add(tgt, idx, src, axis=0):
    return tgt.clone().index_add_(axis, idx, src)
def _segment_sum(src, seg, n):
    out = torch.zeros((n,) + src.shape[1:], dtype=src.dtype)
    return out.index_add_(0, seg, src)
def _pad(x, pw):
    flat = tuple(v for pair in reversed(pw) for v in pair)
    return torch.nn.functional.pad(x, flat)

kernel_name = 'standalone__deep_cross_xdeepfm__recsys'

def setup_inputs():

    _w = (lambda a: (lambda t: t.to(torch.bfloat16) if t.is_floating_point() else t)(torch.as_tensor(a)))
    B, F, D, L = 1024, 26, 128, 3
    V = min(100000, 100000)
    Din = F * D
    return {
        "idx": _w((lambda lo, hi, *s: torch.randint(lo, hi, s))(0, V, B, F).to(torch.int64)),
        "table": _w((lambda *s: torch.randn(*s, dtype=torch.bfloat16) * 0.8)(V, D)),
        "ws_cin": _w((lambda *s: torch.randn(*s, dtype=torch.bfloat16) * 0.2)(L, F, F, F) * (1.0 / F)),
        "w_cin_out": _w((lambda *s: torch.randn(*s, dtype=torch.bfloat16) * 0.2)(L * F) * ((L * F) ** -0.5)),
        "w_dnn1": _w((lambda *s: torch.randn(*s, dtype=torch.bfloat16) * 0.8)(Din, Din) * (Din ** -0.5)),
        "b_dnn1": _w((lambda *s: torch.randn(*s, dtype=torch.bfloat16) * 3.2)(Din) * 0.1),
        "w_dnn2": _w((lambda *s: torch.randn(*s, dtype=torch.bfloat16) * 0.2)(Din) * (Din ** -0.5)),
        "b_out": _w((lambda *s: torch.randn(*s, dtype=torch.bfloat16) * 0.2)(1)),
    }

def reference(idx, table, ws_cin, w_cin_out, w_dnn1, b_dnn1, w_dnn2, b_out):
    x0 = table[idx]
    B = x0.shape[0]
    L = ws_cin.shape[0]
    xk = x0
    pooled = []
    for l in range(L):
        xk = torch.einsum('bid,bjd,hij->bhd', xk, x0, ws_cin[l])
        pooled.append(xk.sum(axis=-1))
    p_plus = torch.stack(pooled, axis=1).reshape(B, -1)
    logit_cin = p_plus @ w_cin_out
    h = x0.reshape(B, -1)
    h = _gelu(h @ w_dnn1 + b_dnn1)
    logit_dnn = h @ w_dnn2
    return logit_cin + logit_dnn + b_out
```

```python
class Asm:
    def __init__(self):
        self.L = []
        self.vm = []
        self.lg = []
    def e(self, s):
        for ln in s.split("\n"):
            self.L.append("    " + ln.strip() if not ln.strip().endswith(":") else ln.strip())
    def c(self, s):
        self.L.append("    ; " + s)
    def label(self, s):
        self.L.append(s + ":")
    def vmem(self, s, tag):
        self.e(s); self.vm.append(tag)
        assert len(self.vm) <= 63, "too many outstanding vmem: %d" % len(self.vm)
    def lds(self, s, tag):
        if len(self.lg) >= 15:
            self.e("s_waitcnt lgkmcnt(12)"); self.lg = self.lg[-12:]
        self.e(s); self.lg.append(tag)
    def _need(self, q, tags):
        if not isinstance(tags, (list, tuple, set)) or (isinstance(tags, tuple)):
            tags = [tags]
        last = -1
        for i, t in enumerate(q):
            if t in tags: last = i
        return last
    def wait_vm(self, tags):
        last = self._need(self.vm, tags)
        if last < 0: return False
        n = len(self.vm) - 1 - last
        self.e(f"s_waitcnt vmcnt({n})")
        self.vm = self.vm[last + 1:]
        return True
    def wait_lg(self, tags):
        last = self._need(self.lg, tags)
        if last < 0: return False
        n = len(self.lg) - 1 - last
        self.e(f"s_waitcnt lgkmcnt({n})")
        self.lg = self.lg[last + 1:]
        return True
    def wait_all(self):
        self.e("s_waitcnt vmcnt(0) lgkmcnt(0)"); self.vm = []; self.lg = []
    def wait_lg0(self):
        self.e("s_waitcnt lgkmcnt(0)"); self.lg = []
    def wait_vm0(self):
        self.e("s_waitcnt vmcnt(0)"); self.vm = []
    def text(self):
        return "\n".join(self.L) + "\n"

def vr(b, n=4): return f"v[{b}:{b+n-1}]"
def ar(b, n=4): return f"a[{b}:{b+n-1}]"
def sr(b, n=4): return f"s[{b}:{b+n-1}]"
```

```python
def sigma(r):
    if r == 24: return 25
    if r == 25: return 24
    m, e = r // 2, r % 2
    q, c = m // 4, m % 4
    return 2 * (4 * q + (c + 1) % 4) + e

def tau(m):
    if m == 12: return 12
    return 4 * (m // 4) + (m % 4 + 1) % 4

def build():
    seen = set(); chosen = []
    for m in range(13):
        for n in range(m, 13):
            if (m, n) in seen: continue
            orb = []; cur = (m, n)
            while cur not in seen:
                seen.add(cur); orb.append(cur)
                a, b = tau(cur[0]), tau(cur[1]); cur = (min(a, b), max(a, b))
            if len(orb) == 1:
                assert orb[0] == (12, 12); chosen.append(orb[0])
            else:
                assert len(orb) % 2 == 0
                chosen += orb[0::2]
    slots = []
    singles = []
    for (m, n) in chosen:
        if m != n:
            slots += [(2*m, 2*n), (2*m+1, 2*n), (2*m, 2*n+1), (2*m+1, 2*n+1)]
        elif m == 12:
            slots += [(24, 24), (24, 25)]
        else:
            slots += [(2*m, 2*m), (2*m+1, 2*m+1)]
            singles.append((2*m, 2*m+1))
    slots += singles
    assert len(slots) == 176
    cov = {}
    for (a, b) in slots:
        for h in (0, 1):
            x, y = (a, b) if h == 0 else (sigma(a), sigma(b))
            k = (min(x, y), max(x, y)); cov[k] = cov.get(k, 0) + 1
    assert len(cov) == 351 and all(v == 1 for k, v in cov.items() if k != (24, 25)) and cov[(24, 25)] == 2
    lin = [r for m in (0, 2, 4, 6, 8, 10) for r in (2*m, 2*m+1)] + [24]
    assert sorted(lin + [sigma(r) for r in lin]) == list(range(26))
    return slots, lin

CPITCH = 72
def table():
    slots, lin = build()
    ZERO = 28 * 2
    rows = []
    for t in range(256):
        tt = t if t < 176 else (t - 16 if 192 <= t < 208 else 255)
        s, half, eps = tt >> 3, (tt >> 2) & 1, tt & 3
        xo, yo, mm = [], [], []
        for k in (0, 1):
            p = 8 * s + 2 * eps + k
            if p < 176:
                a, b = slots[p]
                if half: a, b = sigma(a), sigma(b)
                single = (a == b) or {a, b} == {24, 25}
                xo += [a * 52 + b * 2, b * 52 + a * 2]
                mm.append(0 if single else 1)
                yo += [a * CPITCH + b * 2, ZERO if single else b * CPITCH + a * 2]
            elif p < 189:
                a = lin[p - 176]
                if half: a = sigma(a)
                xo += [0, 0]; mm.append(0)
                yo += [a * CPITCH + 26 * 2, ZERO]
            else:
                xo += [0, 0]; mm.append(0); yo += [ZERO, ZERO]
        rows.append([xo[0] | xo[1] << 16, xo[2] | xo[3] << 16, yo[0] | yo[1] << 16, yo[2] | yo[3] << 16,
                     0x3f800000 if mm[0] else 0, 0x3f800000 if mm[1] else 0, 0, 0])
    return rows
if __name__ == '__main__':
    s, l = build(); print(s); print(l)
```

```python
import sys, argparse
from asmlib import *
KN = 'standalone__deep_cross_xdeepfm__recsys_kernel'

S_IDX, S_TAB, S_WCIN, S_WCO, S_W1, S_B1, S_W2, S_BO, S_OUT, S_DBG, S_WS = 4, 6, 8, 10, 12, 14, 16, 18, 20, 22, 24
SRD_IDX, SRD_TAB, SRD_W1, SRD_B1, SRD_W2, SRD_WS, SRD_DBG = 28, 32, 36, 40, 44, 48, 52
S_ROW = 56
S_SELLO, S_SELHI = 64, 65
S_WAVE, S_MT, S_NT = 66, 67, 68
S_T0, S_T1, S_T2, S_T3 = 70, 71, 72, 73
S_PC = 74
S_ORD = 76
S_XB = 78
S_TS = 80
ROWB = 6656
IDXBASE = 131072
LDS_BYTES = 163840

V_XOFF = 2
V_WBASE, V_WOFF, V_IDXB, V_IDXA, V_LX0, V_LX1, V_FR0 = 6, 7, 8, 9, 10, 11, 12
V_T0, V_T1, V_T2 = 13, 14, 15
V_FR1 = 13
V_WT = 16
V_WRAW = 32
V_ACC = 128
A_X = 128

def acc(j, t):
    if t < 4: return vr(V_ACC + (t * 8 + j) * 4)
    return ar(((t - 4) * 8 + j) * 4)

def srd(a, d, ptr, nbytes):
    a.e(f"s_mov_b32 s{d}, s{ptr}\ns_mov_b32 s{d+1}, s{ptr+1}\ns_mov_b32 s{d+2}, {nbytes}\ns_mov_b32 s{d+3}, 0x00020000")

class Gen:
    def __init__(self, o):
        self.o = o
        self.a = Asm()
        self.nts = 0
    def stamp(self):
        if not self.o.stamps: return
        a = self.a
        a.e(f"s_memtime s[{S_TS+2*self.nts}:{S_TS+2*self.nts+1}]")
        a.wait_lg0()
        self.nts += 1

    def header(self):
        a = self.a
        a.L.append(f"; @launch grid=(256,1,1) block=(256,1,1) lds={LDS_BYTES}")
        a.L.append('.amdgcn_target "amdgcn-amd-amdhsa--gfx950"')
        a.L.append(f".text\n.globl {KN}\n.p2align 8\n.type {KN},@function\n{KN}:")
    def footer(self):
        a = self.a
        a.L.append(f'''.section .rodata,"a"
.p2align 6
.amdhsa_kernel {KN}
  .amdhsa_next_free_vgpr 512
  .amdhsa_next_free_sgpr 102
  .amdhsa_accum_offset 256
  .amdhsa_group_segment_fixed_size 0
  .amdhsa_kernarg_size 88
  .amdhsa_user_sgpr_count 2
  .amdhsa_user_sgpr_kernarg_segment_ptr 1
  .amdhsa_system_sgpr_workgroup_id_x 1
.end_amdhsa_kernel''')

    def entry(self):
        a, o = self.a, self.o
        a.e("s_cmp_ge_u32 s2, 256\ns_cbranch_scc1 L_end")
        if o.stamps:
            a.e(f"s_memrealtime s[{S_TS+18}:{S_TS+19}]")
        self.stamp()
        a.e("s_load_dwordx16 s[4:19], s[0:1], 0\ns_load_dwordx4 s[20:23], s[0:1], 64\ns_load_dwordx2 s[24:25], s[0:1], 80")
        a.e(f"s_getpc_b64 s[{S_PC}:{S_PC+1}]")
        a.e("v_lshlrev_b32 v1, 7, v0")
        a.vmem(f"global_load_dword v{V_T2}, v1, s[{S_PC}:{S_PC+1}]", 'pf')
        a.e("v_lshrrev_b32 v1, 6, v0\nv_and_b32 v0, 63, v0")
        a.e(f"v_readfirstlane_b32 s{S_WAVE}, v1")
        a.e(f"s_and_b32 s{S_T0}, s2, 7\ns_lshr_b32 s{S_T1}, s2, 3")
        a.e(f"s_cmp_lt_u32 s{S_T1}, 6\ns_cbranch_scc1 L_cin")

    def orders(self):
        o = self.o
        if o.order == 'lock':
            return [list(range(13))] * 4
        if o.order == 'win':
            res = []
            for rho in range(4):
                seq = []
                for w0, n in ((0, 4), (4, 4), (8, 5)):
                    seq += [w0 + (rho + i) % n for i in range(n)]
                res.append(seq)
            return res
        if o.order == 'slide':
            res = []
            for rho in range(4):
                seq = [rho]; done = {rho}
                for tau in range(1, 13):
                    if tau <= 9 and (tau - 1) % 4 == rho: b = tau + 3
                    else:
                        b = min(x for x in range(13) if x not in done and x <= tau + 2)
                    seq.append(b); done.add(b)
                res.append(seq)
            return res

    def gemm(self):
        a, o = self.a, self.o
        NS = 26
        a.e(f"s_sub_u32 s{S_T1}, s{S_T1}, 6")
        if o.map == '2x4':
            a.e(f"s_lshr_b32 s{S_T2}, s{S_T0}, 1\ns_mul_i32 s{S_T2}, s{S_T2}, 26\ns_add_u32 s{S_T2}, s{S_T2}, s{S_T1}")
            a.e(f"s_lshr_b32 s{S_NT}, s{S_T2}, 2\ns_and_b32 s{S_T2}, s{S_T2}, 3\ns_and_b32 s{S_T0}, s{S_T0}, 1\ns_lshl_b32 s{S_T0}, s{S_T0}, 2\ns_add_u32 s{S_MT}, s{S_T0}, s{S_T2}")
        elif o.map == '1x8':
            a.e(f"s_mul_i32 s{S_T2}, s{S_T0}, 26\ns_add_u32 s{S_T2}, s{S_T2}, s{S_T1}")
            a.e(f"s_lshr_b32 s{S_NT}, s{S_T2}, 3\ns_and_b32 s{S_MT}, s{S_T2}, 7")
        ords = self.orders()
        a.e(f"s_add_u32 s{S_T0}, s{S_MT}, s{S_NT}\ns_and_b32 s{S_T0}, s{S_T0}, 3")
        for rho in range(4):
            v = 0
            for i, b in enumerate(ords[rho]): v |= b << (4 * i)
            lo, hi = v & 0xffffffff, v >> 32
            if rho == 0:
                a.e(f"s_mov_b32 s{S_ORD}, {lo:#x}\ns_mov_b32 s{S_ORD+1}, {hi:#x}")
            else:
                a.e(f"s_cmp_eq_u32 s{S_T0}, {rho}\ns_cselect_b32 s{S_ORD}, {lo:#x}, s{S_ORD}\ns_cselect_b32 s{S_ORD+1}, {hi:#x}, s{S_ORD+1}")
        def getblk(dst, b):
            a.e(f"s_bfe_u32 s{dst}, s{S_ORD + b // 8}, {(4 * (b % 8)) | (4 << 16):#x}")
        for r in range(8):
            a.e(f"s_mov_b32 s{S_ROW+r}, {r*ROWB}")
        a.e(f"s_mov_b32 s{S_SELLO}, 0x05040100\ns_mov_b32 s{S_SELHI}, 0x07060302")
        a.e(f"v_and_b32 v{V_T0}, 15, v0\nv_lshrrev_b32 v{V_T1}, 4, v0")
        a.e(f"s_mul_i32 s{S_T0}, s{S_WAVE}, {64*ROWB}\ns_lshl_b32 s{S_T1}, s{S_NT}, 8\ns_add_u32 s{S_T0}, s{S_T0}, s{S_T1}")
        a.e(f"v_mul_u32_u24 v{V_WBASE}, {8*ROWB}, v{V_T1}")
        a.e(f"v_lshl_add_u32 v{V_WBASE}, v{V_T0}, 4, v{V_WBASE}")
        a.e(f"v_add_u32 v{V_WBASE}, s{S_T0}, v{V_WBASE}")
        a.e(f"s_and_b32 s{S_T0}, s{S_WAVE}, 1\ns_lshl_b32 s{S_T0}, s{S_T0}, 7")
        a.e(f"v_and_b32 v1, 7, v0\nv_xor_b32 v1, v1, v{V_T1}\nv_lshlrev_b32 v1, 4, v1\nv_add_u32 v{V_LX0}, s{S_T0}, v1\nv_xor_b32 v{V_LX1}, 64, v{V_LX0}")
        a.e(f"s_mul_i32 s{S_T0}, s{S_WAVE}, 3328\ns_lshr_b32 s{S_T1}, s{S_WAVE}, 1\ns_lshl_b32 s{S_T1}, s{S_T1}, 2\ns_add_u32 s{S_T0}, s{S_T0}, s{S_T1}\ns_add_u32 s{S_T0}, s{S_T0}, {IDXBASE}")
        a.e(f"v_lshrrev_b32 v1, 3, v0\nv_mul_u32_u24 v{V_IDXB}, 104, v1\nv_add_u32 v{V_IDXB}, s{S_T0}, v{V_IDXB}")
        a.e(f"s_lshl_b32 s{S_XB}, s{S_WAVE}, 15")
        a.e(f"v_lshrrev_b32 v1, 1, v{V_T0}\nv_xor_b32 v1, v1, v{V_T1}\nv_lshlrev_b32 v1, 4, v1\nv_lshl_add_u32 v1, v{V_T0}, 7, v1\nv_add_u32 v{V_FR0}, s{S_XB}, v1\nv_xor_b32 v{V_FR1}, 64, v{V_FR0}")
        a.e(f"v_lshlrev_b32 v1, 4, v0")
        a.e(f"s_lshl_b32 s{S_T1}, s{S_NT}, 8\nv_lshlrev_b32 v2, 6, v{V_T1}\nv_add_u32 v2, s{S_T1}, v2")
        a.e("s_waitcnt lgkmcnt(0)")
        self.stamp()
        srd(a, SRD_IDX, S_IDX, 1024 * 104)
        srd(a, SRD_W1, S_W1, 3328 * ROWB)
        srd(a, SRD_B1, S_B1, ROWB)
        a.e(f"s_mul_i32 s{S_T3}, s{S_MT}, 13312")
        for n in range(6):
            a.e(f"s_add_u32 s{S_T0}, s{S_WAVE}, {4*n}")
            a.e(f"s_sub_u32 s{S_T1}, s{S_T0}, 13\ns_cmp_lt_u32 s{S_T0}, 13\ns_cselect_b32 s{S_T1}, s{S_T0}, s{S_T1}")
            a.e(f"s_lshl_b32 s{S_T1}, s{S_T1}, 10\ns_add_u32 s{S_T1}, s{S_T1}, s{S_T3}")
            a.e(f"s_lshl_b32 s{S_T0}, s{S_T0}, 10\ns_add_u32 m0, s{S_T0}, {IDXBASE}\ns_nop 0")
            a.vmem(f"buffer_load_dwordx4 v1, {sr(SRD_IDX)}, s{S_T1} offen lds", 'idx')
        for r in range(4):
            a.vmem(f"buffer_load_dwordx4 {vr(V_WT+4*r)}, v2, {sr(SRD_B1)}, 0 offen offset:{16*r}", 'bias')
        srd(a, SRD_TAB, S_TAB, 100000 * 256)
        srd(a, SRD_W2, S_W2, ROWB)
        srd(a, SRD_WS, S_WS, 0x1000000)

        def waddr(s):
            if s >= NS: return
            if s % 2 == 0:
                getblk(S_T0, s // 2)
                a.e(f"s_mul_i32 s{S_T0}, s{S_T0}, {256*ROWB}")
                a.e(f"v_add_u32 v{V_WOFF}, s{S_T0}, v{V_WBASE}")
            else:
                a.e(f"v_add_u32 v{V_WOFF}, {32*ROWB}, v{V_WOFF}")
        def wload(s, r):
            if s >= NS: return
            if r == 0: waddr(s)
            if o.noW and s >= 3: return
            a.vmem(f"buffer_load_dwordx4 {vr(V_WRAW + (s % 3) * 32 + 4 * r)}, v{V_WOFF}, {sr(SRD_W1)}, s{S_ROW+r} offen", ('w', s))
        for r in range(8): wload(0, r)
        for i in range(V_ACC + 64, 256): a.e(f"v_mov_b32 v{i}, 0")
        for i in range(128): a.e(f"v_accvgpr_write_b32 a{i}, 0")
        a.wait_vm('idx')
        a.e("s_barrier")
        self.stamp()

        NXO = 4
        def idxaddr(b):
            if b >= 13: return
            getblk(S_T1, b)
            a.e(f"s_lshl_b32 s{S_T1}, s{S_T1}, 3\nv_add_u32 v{V_IDXA}, s{S_T1}, v{V_IDXB}")
        def idxread(b, u):
            if b >= 13: return
            if u == 0: idxaddr(b)
            a.lds(f"ds_read_b32 v{V_XOFF + u % NXO}, v{V_IDXA} offset:{u*832}", ('i', b, u))
        def xdma(b, u):
            if b >= 13: return
            a.wait_lg(('i', b, u))
            r = V_XOFF + u % NXO
            a.e(f"s_add_u32 m0, s{S_XB}, {(b % 2) * 16384 + u * 1024}")
            a.e(f"v_lshl_add_u32 v{r}, v{r}, 8, v{V_LX0 if u % 2 == 0 else V_LX1}")
            if o.noX and b >= 2: return
            a.vmem(f"buffer_load_dwordx4 v{r}, {sr(SRD_TAB)}, 0 offen lds", ('x', b, u))
        def xfrag(s, t):
            if s >= NS: return
            b, sub = s // 2, s % 2
            a.wait_vm([('x', b, 2 * t), ('x', b, 2 * t + 1)])
            a.lds(f"ds_read_b128 {ar(A_X + (s % 2) * 32 + 4 * t)}, v{V_FR0 if sub == 0 else V_FR1} offset:{(b % 2) * 16384 + t * 2048}", ('f', s, t))
        def xblock(b):
            for u in range(NXO): idxread(b, u)
            for u in range(16):
                xdma(b, u)
                if u + NXO < 16: idxread(b, u + NXO)
        xblock(0)
        for r in range(8): wload(1, r)
        xblock(1)
        for r in range(8): wload(2, r)
        a.wait_vm('bias')
        a.e(f"s_mov_b32 s{S_T0}, 0xffff0000")
        for j in range(8):
            for r in range(4):
                src = V_WT + 4 * r + j // 2
                d0 = V_ACC + (0 * 8 + j) * 4 + r; d1 = V_ACC + (1 * 8 + j) * 4 + r
                if j % 2 == 0: a.e(f"v_lshlrev_b32 v{d0}, 16, v{src}\nv_lshlrev_b32 v{d1}, 16, v{src}")
                else: a.e(f"v_and_b32 v{d0}, s{S_T0}, v{src}\nv_and_b32 v{d1}, s{S_T0}, v{src}")

        def perm(s, jp, i, buf):
            jj, p = i // 4, i % 4
            a.wait_vm(('w', s))
            base = V_WRAW + (s % 3) * 32
            lo = base + 4 * (2 * p) + jp; hi = base + 4 * (2 * p + 1) + jp
            sel = S_SELLO if jj == 0 else S_SELHI
            a.e(f"v_perm_b32 v{V_WT + 8*buf + 4*jj + p}, v{hi}, v{lo}, s{sel}")
        def mfma(s, j, t, buf):
            a.wait_lg(('f', s, t))
            if o.noM: return
            a.e(f"v_mfma_f32_16x16x32_bf16 {acc(j,t)}, {vr(V_WT + 8*buf + 4*(j%2))}, {ar(A_X + (s % 2) * 32 + 4 * t)}, {acc(j,t)}")

        for i in range(8): perm(0, 0, i, 0)
        for t in range(8): xfrag(0, t)
        self.stamp()
        PERMPOS = [0, 2, 4, 6, 8, 10, 12, 13]
        LDPOS = [1, 5, 9, 14]
        MISCPOS = [3, 7, 11, 15]
        gi = 0
        for s in range(NS - 1):
            b, sub = s // 2, s % 2
            a.c(f"---- step {s}")
            for g in range(4):
                fill = {k: [] for k in range(16)}
                buf = gi % 2
                ns, ng = (s, g + 1) if g < 3 else (s + 1, 0)
                for i in range(8):
                    fill[PERMPOS[i]].append(lambda ns=ns, ng=ng, i=i, nb=1 - buf: perm(ns, ng, i, nb))
                if g == 3:
                    for i in range(4): fill[LDPOS[i]].append(lambda i=i: wload(s + 3, i))
                if g == 0 and s >= 1:
                    for i in range(4): fill[LDPOS[i]].append(lambda i=i: wload(s + 2, 4 + i))
                if s >= 1:
                    B = (s + 3) // 2
                    u0 = 0 if sub == 1 else 8
                    if g in (0, 1):
                        for i in range(4): fill[MISCPOS[i]].append(lambda B=B, u=u0 + 4 * g + i: idxread(B, u))
                    if g in (1, 2):
                        for i in range(4): fill[LDPOS[i]].append(lambda B=B, u=u0 + 4 * (g - 1) + i: xdma(B, u))
                if g in (2, 3):
                    for i in range(4): fill[MISCPOS[i]].append(lambda t=4 * (g - 2) + i: xfrag(s + 1, t))
                m = 0
                for t in range(8):
                    for jj in range(2):
                        mfma(s, 2 * g + jj, t, buf)
                        for f in fill[m]: f()
                        m += 1
                gi += 1
        s = NS - 1
        a.c("---- last step")
        W2R = V_WRAW + ((s + 1) % 3) * 32
        a.e(f"v_lshrrev_b32 v{V_T1}, 4, v0\ns_lshl_b32 s{S_T1}, s{S_NT}, 8\nv_lshlrev_b32 v2, 6, v{V_T1}\nv_add_u32 v2, s{S_T1}, v2")
        for r in range(4):
            a.vmem(f"buffer_load_dwordx4 {vr(W2R+4*r)}, v2, {sr(SRD_W2)}, 0 offen offset:{16*r}", 'w2')
        srd(a, SRD_DBG, S_DBG, 192)
        a.e(f"v_lshlrev_b32 v{V_T2}, 2, v0")
        a.vmem(f"buffer_load_dword v{V_WOFF}, v{V_T2}, {sr(SRD_DBG)}, 0 offen sc1", 'flag')
        a.e(f"s_lshl_b32 s{S_T0}, s{S_WAVE}, 15\nv_lshlrev_b32 v1, 4, v0\nv_add_u32 v3, s{S_T0}, v1")
        a.e(f"s_xor_b32 s{S_T0}, s{S_T0}, 0x10000\nv_add_u32 v4, s{S_T0}, v1")
        a.e(f"s_add_u32 s{S_T1}, s{S_WAVE}, 1\ns_and_b32 s{S_T1}, s{S_T1}, 3\ns_lshl_b32 s{S_T1}, s{S_T1}, 15\nv_add_u32 v5, s{S_T1}, v1")
        pend = []
        cnt = 0
        def flushw(force=False):
            while pend and (force or pend[0][0] <= cnt):
                _, j, t = pend.pop(0)
                a.lds(f"ds_write_b128 v3, {acc(j,t)} offset:{((t-4)*8+j)*1024}", 'r1w')
                if not force: break
        for half in (1, 0):
            for g in range(4):
                buf = gi % 2
                nxt = (g + 1) if g < 3 else (0 if half == 1 else None)
                m = 0
                for t in range(4 * half, 4 * half + 4):
                    for jj in range(2):
                        mfma(s, 2 * g + jj, t, buf)
                        cnt += 1
                        if half == 1: pend.append((cnt + 8, 2 * g + jj, t))
                        if nxt is not None:
                            if m < 6: perm(s, nxt, m, 1 - buf)
                            if m == 5: perm(s, nxt, 6, 1 - buf)
                            if m == 6: perm(s, nxt, 7, 1 - buf)
                        flushw()
                        m += 1
                gi += 1
        flushw(True)
        self.stamp()
        a.wait_lg0()
        a.e("s_barrier")
        T = [V_WRAW + (s % 3) * 32 + 4 * i for i in range(8)] + [V_WRAW + ((s + 2) % 3) * 32 + 4 * i for i in range(6)]
        def exch(addr, tiles, tag, post):
            q = []
            tf = list(T)
            it = 0
            n = len(tiles)
            done = 0
            while done < n:
                while it < n and tf and len(q) < 6:
                    tr = tf.pop(0)
                    a.lds(f"ds_read_b128 {vr(tr)}, v{addr} offset:{tiles[it][0]}", (tag, it))
                    q.append((it, tr)); it += 1
                i, tr = q.pop(0)
                a.wait_lg((tag, i))
                for r in range(4):
                    a.e(f"v_add_f32 v{tiles[i][1]+r}, v{tiles[i][1]+r}, v{tr+r}")
                tf.append(tr)
                post(i)
                done += 1
        tilesQ1 = [(((t) * 8 + j) * 1024, V_ACC + (t * 8 + j) * 4) for t in (2, 3) for j in range(8)]
        tilesQ0 = [(((t) * 8 + j) * 1024, V_ACC + (t * 8 + j) * 4) for t in (0, 1) for j in range(8)]
        def post1(i):
            if i < 16:
                a.lds(f"ds_write_b128 v4, {vr(tilesQ1[i][1])} offset:{tilesQ1[i][0]}", 'r2w')
        exch(4, tilesQ1 + tilesQ0, 'r1', post1)
        self.stamp()
        a.wait_lg0()
        a.e("s_barrier")
        tiles2 = [(tilesQ1[i][0], tilesQ0[i][1]) for i in range(16)]
        exch(5, tiles2, 'r2', lambda i: None)
        self.stamp()
        W2F = V_ACC + 64
        a.wait_vm('w2')
        a.e(f"s_mov_b32 s{S_T0}, 0xffff0000")
        for j in range(8):
            for r in range(4):
                src = W2R + 4 * r + j // 2
                d = W2F + j * 4 + r
                if j % 2 == 0: a.e(f"v_lshlrev_b32 v{d}, 16, v{src}")
                else: a.e(f"v_and_b32 v{d}, s{S_T0}, v{src}")
        import struct, math
        def f2u(x): return struct.unpack('<I', struct.pack('<f', x))[0]
        k1 = -2.0 * math.sqrt(2.0 / math.pi) * math.log2(math.e)
        k2 = k1 * 0.044715
        a.e(f"s_mov_b32 s{S_T1}, {f2u(k2):#x}\nv_mov_b32 v6, {f2u(k1):#x}")
        a.e("v_mov_b32 v8, 0\nv_mov_b32 v9, 0")
        TT = V_ACC + 96
        G = 8
        for t in range(2):
            for e0 in range(0, 32, G):
                xs = [V_ACC + t * 32 + e0 + i for i in range(G)]
                ws = [W2F + e0 + i for i in range(G)]
                tm = [TT + i for i in range(G)]
                for i in range(G): a.e(f"v_mul_f32 v{tm[i]}, v{xs[i]}, v{xs[i]}")
                for i in range(G): a.e(f"v_fma_f32 v{tm[i]}, v{tm[i]}, s{S_T1}, v6")
                for i in range(G): a.e(f"v_mul_f32 v{tm[i]}, v{tm[i]}, v{xs[i]}")
                for i in range(G): a.e(f"v_exp_f32 v{tm[i]}, v{tm[i]}")
                for i in range(G): a.e(f"v_mul_f32 v{xs[i]}, v{xs[i]}, v{ws[i]}")
                for i in range(G): a.e(f"v_add_f32 v{tm[i]}, 1.0, v{tm[i]}")
                for i in range(G): a.e(f"v_rcp_f32 v{tm[i]}, v{tm[i]}")
                a.e("s_nop 0")
                for i in range(G): a.e(f"v_fmac_f32 v{8+t}, v{xs[i]}, v{tm[i]}")
        a.e("s_nop 1\nv_permlane32_swap_b32 v8, v9\ns_nop 1\nv_add_f32 v8, v8, v9\nv_mov_b32 v9, v8\ns_nop 1\nv_permlane16_swap_b32 v8, v9\ns_nop 1\nv_add_f32 v8, v8, v9")
        a.e(f"v_lshrrev_b32 v1, 5, v0\nv_lshlrev_b32 v1, 4, v1\nv_and_b32 v2, 15, v0\nv_add_u32 v1, v1, v2")
        a.e(f"s_lshl_b32 s{S_T0}, s{S_MT}, 7\ns_lshl_b32 s{S_T1}, s{S_WAVE}, 5\ns_add_u32 s{S_T0}, s{S_T0}, s{S_T1}\ns_lshl_b32 s{S_T1}, s{S_NT}, 10\ns_add_u32 s{S_T0}, s{S_T0}, s{S_T1}")
        a.e(f"v_add_u32 v1, s{S_T0}, v1\nv_lshlrev_b32 v1, 3, v1\nv_mov_b32 v9, 1")
        a.wait_vm('flag')
        a.e(f"s_mov_b32 exec_lo, -1\ns_mov_b32 exec_hi, 0xffff\ns_mov_b32 s{S_T2}, 0")
        a.label("L_fchk")
        a.e(f"v_cmp_ne_u32 vcc, 1, v{V_WOFF}\ns_cbranch_vccz L_fok\ns_sleep 2")
        a.e(f"buffer_load_dword v{V_WOFF}, v{V_T2}, {sr(SRD_DBG)}, 0 offen sc1\ns_waitcnt vmcnt(0)\ns_add_u32 s{S_T2}, s{S_T2}, 1\ns_cmp_lt_u32 s{S_T2}, 20000\ns_cbranch_scc1 L_fchk")
        a.label("L_fok")
        a.e("s_mov_b32 exec_lo, 0xffff\ns_mov_b32 exec_hi, 0xffff")
        a.vmem(f"buffer_store_dwordx2 v[8:9], v1, {sr(SRD_WS)}, 0 offen sc1", 'st')
        a.e("s_mov_b64 exec, -1")
        self.stamp()
        self.dump_stamps()
        a.e("s_endpgm")

    def dump_stamps(self):
        a = self.a
        if not self.o.stamps: return
        a.e(f"s_memrealtime s[{S_TS+20}:{S_TS+21}]\ns_waitcnt lgkmcnt(0)")
        a.e(f"s_lshl_b32 s{S_T0}, s2, 2\ns_add_u32 s{S_T0}, s{S_T0}, s{S_WAVE}\ns_lshl_b32 s{S_T0}, s{S_T0}, 6\ns_add_u32 s{S_T0}, s{S_T0}, 0x100000")
        a.e(f"v_mov_b32 v1, s{S_T0}")
        for i in range(self.nts):
            a.e(f"s_sub_u32 s{S_T1}, s{S_TS+2*i}, s{S_TS}\nv_mov_b32 v2, s{S_T1}")
            a.e(f"buffer_store_dword v2, v1, {sr(SRD_WS)}, 0 offen offset:{4*i}")
        a.e(f"v_mov_b32 v2, s{S_TS+18}\nbuffer_store_dword v2, v1, {sr(SRD_WS)}, 0 offen offset:56")
        a.e(f"v_mov_b32 v2, s{S_TS+20}\nbuffer_store_dword v2, v1, {sr(SRD_WS)}, 0 offen offset:60")

    def cin(self):
        a, o = self.a, self.o
        from cinplan import build, sigma, CPITCH
        slots, lin = build()
        a.vm = []; a.lg = []
        nts_save = self.nts; self.nts = 1
        W2L, FX, FY, CP, VL, W2V, XS = 35152, 35328, 58560, 84096, 139392, 141440, 147456
        FP = 1056
        SRD_WC, SRD_OUT, SRD_WCO = SRD_W1, SRD_B1, SRD_W2
        S_R0, S_N, S_W3, S_IO, S_CNT = 67, 68, 56, 69, 79
        a.label("L_cin")
        a.vm.append('pf')
        a.e(f"s_mul_i32 s{S_R0}, s2, 21\ns_min_u32 s{S_T0}, s2, 16\ns_add_u32 s{S_R0}, s{S_R0}, s{S_T0}")
        a.e(f"s_cmp_lt_u32 s2, 16\ns_cselect_b32 s{S_N}, 22, 21")
        a.e(f"s_lshl_b32 s{S_T0}, s{S_WAVE}, 6\nv_add_u32 v1, s{S_T0}, v0")
        a.e(f"s_getpc_b64 s[{S_PC}:{S_PC+1}]")
        a.label("L_pc1")
        a.e(f"s_add_u32 s{S_PC}, s{S_PC}, L_tab-L_pc1\ns_addc_u32 s{S_PC+1}, s{S_PC+1}, 0")
        a.e("v_lshlrev_b32 v2, 5, v1")
        a.vmem(f"global_load_dwordx4 v[16:19], v2, s[{S_PC}:{S_PC+1}]", 'tab')
        a.vmem(f"global_load_dwordx2 v[20:21], v2, s[{S_PC}:{S_PC+1}] offset:16", 'tab')
        a.e("s_waitcnt lgkmcnt(0)")
        self.stamp()
        a.e(f"s_load_dwordx8 s[56:63], s[{S_WCO}:{S_WCO+1}], 104\ns_load_dwordx4 s[12:15], s[{S_WCO}:{S_WCO+1}], 136\ns_load_dword s16, s[{S_WCO}:{S_WCO+1}], 152")
        a.e(f"s_load_dword s17, s[{S_BO}:{S_BO+1}], 0") if False else None
        w3reg = list(range(56, 64)) + [12, 13, 14, 15, 16]
        srd(a, SRD_WC, S_WCIN, 105456)
        srd(a, SRD_IDX, S_IDX, 1024 * 104)
        srd(a, SRD_WCO, S_WCO, 156)
        a.e("v_lshlrev_b32 v2, 3, v1\nv_add_u32 v2, 70304, v2\nv_mov_b32 v3, 0x7ff00000\nv_cmp_gt_u32 vcc, 169, v1\ns_nop 1\nv_cndmask_b32 v2, v3, v2, vcc")
        W3R = 128
        for g in range(26):
            if g and g % 3 == 0: a.e(f"v_add_u32 v2, {3*1352}, v2")
            a.vmem(f"buffer_load_dwordx2 {vr(W3R+2*g,2)}, v2, {sr(SRD_WC)}, 0 offen offset:{(g%3)*1352}", ('w3', g))
        a.e("v_lshlrev_b32 v2, 1, v0\nv_cmp_gt_u32 vcc, 26, v0\ns_nop 1\nv_cndmask_b32 v2, v3, v2, vcc")
        a.vmem(f"buffer_load_ushort v22, v2, {sr(SRD_WCO)}, 0 offen offset:52", 'w12')
        a.vmem(f"buffer_load_ushort v23, v2, {sr(SRD_WCO)}, 0 offen", 'w12')
        srd(a, SRD_TAB, S_TAB, 100000 * 256)
        srd(a, SRD_WS, S_WS, 0x1000000)
        V_IO = 4
        a.e(f"v_and_b32 v{V_IO}, 0xfc, v0\ns_mul_i32 s{S_IO}, s{S_R0}, 104")
        IDXR = [[24, 25], [26, 27]]
        def idxload(par):
            for u in range(2):
                a.vmem(f"buffer_load_dword v{IDXR[par][u]}, v{V_IO}, {sr(SRD_IDX)}, s{S_IO} offen offset:{64*u}", ('ci', par))
            a.e(f"s_add_u32 s{S_IO}, s{S_IO}, 104")
        idxload(0); idxload(1)
        a.e(f"v_lshlrev_b32 v2, 4, v0\ns_lshl_b32 m0, s{S_WAVE}, 10")
        for k in range(20):
            if k: a.e("s_add_u32 m0, m0, 4096")
            a.e("s_nop 0")
            a.vmem(f"buffer_load_dwordx4 v2, {sr(SRD_WC)}, m0 offen lds", 'wd')
        V_G = 5
        a.e(f"v_and_b32 v2, 31, v1\nv_lshrrev_b32 v3, 5, v1\nv_cmp_gt_u32 s[76:77], s{S_N}, v2\nv_lshl_add_u32 v{V_G}, v3, 10, v2\nv_add_u32 v{V_G}, s{S_R0}, v{V_G}\nv_lshlrev_b32 v{V_G}, 3, v{V_G}")
        a.e("v_mov_b32 v28, 0\nv_mov_b32 v29, 0")
        a.e(f"s_mov_b32 s{SRD_WS+2}, {26*1024*8}")
        a.e("s_mov_b64 exec, s[76:77]")
        for k in range(4):
            a.e(f"s_mov_b32 s{S_T0}, {k*65536}")
            a.vmem(f"buffer_store_dwordx2 v[28:29], v{V_G}, {sr(SRD_WS)}, s{S_T0} offen sc1", 'clr')
        a.e("s_mov_b64 exec, -1")
        V_XL = 6
        a.e(f"s_lshl_b32 s{S_T0}, s{S_WAVE}, 6\nv_and_b32 v{V_XL}, 3, v0\nv_lshlrev_b32 v{V_XL}, 4, v{V_XL}\nv_add_u32 v{V_XL}, s{S_T0}, v{V_XL}")
        a.e(f"s_lshl_b32 s{S_XB}, s{S_WAVE}, 12\ns_add_u32 s{S_XB}, s{S_XB}, {XS}")
        def xdma(par):
            for u in range(2):
                a.e(f"s_add_u32 m0, s{S_XB}, {par*2048 + u*1024}")
                a.e(f"v_lshl_add_u32 v{IDXR[par][u]}, v{IDXR[par][u]}, 8, v{V_XL}")
                a.vmem(f"buffer_load_dwordx4 v{IDXR[par][u]}, {sr(SRD_TAB)}, 0 offen lds", ('cx', par))
        a.e("s_waitcnt lgkmcnt(0)")
        a.e("v_mov_b32 v8, 0\nv_mov_b32 v9, 0\nv_mov_b32 v10, 0\nv_mov_b32 v11, 0")
        a.e(f"s_mov_b32 s{S_T3}, 0xffff0000")
        for g in range(26):
            sw = w3reg[g // 2]
            if g % 2 == 0: a.e(f"s_lshl_b32 s{S_T0}, s{sw}, 16")
            else: a.e(f"s_and_b32 s{S_T0}, s{sw}, 0xffff0000")
            a.wait_vm(('w3', g))
            r = W3R + 2 * g
            a.e(f"v_lshlrev_b32 v12, 16, v{r}\nv_and_b32 v13, s{S_T3}, v{r}\nv_lshlrev_b32 v14, 16, v{r+1}\nv_and_b32 v15, s{S_T3}, v{r+1}")
            a.e(f"v_fmac_f32 v8, s{S_T0}, v12\nv_fmac_f32 v9, s{S_T0}, v13\nv_fmac_f32 v10, s{S_T0}, v14\nv_fmac_f32 v11, s{S_T0}, v15")
        a.e("v_cvt_pk_bf16_f32 v8, v8, v9\nv_cvt_pk_bf16_f32 v9, v10, v11")
        a.e(f"v_lshlrev_b32 v2, 3, v1\nv_add_u32 v2, {VL}, v2")
        a.lds("ds_write_b64 v2, v[8:9]", 'v')
        a.wait_vm('w12')
        a.e(f"v_mul_u32_u24 v2, 52, v0\nv_add_u32 v2, {W2V}, v2")
        a.lds("ds_write_b32 v2, v22", 'v')
        a.wait_vm(('ci', 1))
        xdma(0); xdma(1)
        a.wait_vm('clr')
        a.wait_lg0()
        a.e("s_barrier")
        self.stamp()
        srd(a, SRD_DBG, S_DBG, 256)
        a.e(f"s_cmp_lg_u32 s{S_WAVE}, 0\ns_cbranch_scc1 L_noflag")
        a.e(f"s_lshl_b32 s{S_T0}, s2, 2\nv_mov_b32 v2, s{S_T0}\nv_mov_b32 v3, 1\ns_mov_b64 exec, 1")
        a.e(f"buffer_store_dword v3, v2, {sr(SRD_DBG)}, 0 offen sc1")
        a.e("s_mov_b64 exec, -1")
        a.label("L_noflag")
        a.wait_vm0()
        idxload(0)
        a.e("v_and_b32 v8, 31, v0\nv_lshrrev_b32 v9, 5, v0")
        a.e(f"v_lshlrev_b32 v2, 1, v8\nv_add_u32 v2, {VL}, v2\nv_mov_b32 v3, {W2V}\nv_cmp_eq_u32 vcc, 26, v8\ns_nop 1\nv_cndmask_b32 v2, v2, v3, vcc")
        a.e(f"v_mov_b32 v3, {W2V+2}\nv_cmp_lt_u32 vcc, 26, v8\ns_nop 1\nv_cndmask_b32 v2, v2, v3, vcc")
        a.e("v_mul_u32_u24 v3, 416, v9\nv_add_u32 v2, v2, v3")
        VT = 32
        for i in range(16):
            ks, e = i // 8, i % 8
            a.lds(f"ds_read_u16 v{VT+i}, v2 offset:{(16*ks+e)*52}", ('vt', i))
        a.e("v_bfe_u32 v10, v0, 2, 2\nv_lshl_add_u32 v10, v9, 3, v10\nv_mul_u32_u24 v10, 1352, v10")
        a.e("v_bfe_u32 v11, v0, 4, 1\nv_lshl_add_u32 v10, v11, 5, v10\nv_and_b32 v11, 3, v0\nv_lshl_add_u32 v10, v11, 3, v10")
        a.e(f"s_lshl_b32 s{S_T0}, s{S_WAVE}, 6\ns_add_u32 s{S_T0}, s{S_T0}, {W2L}\nv_add_u32 v10, s{S_T0}, v10")
        a.e(f"s_mul_i32 s{S_T0}, s{S_WAVE}, {32*CPITCH}\ns_add_u32 s{S_T0}, s{S_T0}, {CP}\nv_mul_u32_u24 v11, {CPITCH}, v8\nv_lshl_add_u32 v11, v9, 3, v11\nv_add_u32 v11, s{S_T0}, v11")
        VA = 48
        for i in range(8):
            a.wait_lg(('vt', 2 * i + 1))
            a.e(f"v_lshl_or_b32 v{VA+i}, v{VT+2*i+1}, 16, v{VT+2*i}")
        BT = 56
        DT = 128
        for k in range(6):
            for q in range(4):
                ks, h4 = q // 2, q % 2
                a.lds(f"ds_read_b64_tr_b16 {vr(BT+8*k+2*q,2)}, v10 offset:{(16*ks+4*h4)*1352 + k*256}", ('bt', k))
        for k in range(6):
            a.wait_lg(('bt', k))
            a.e(f"v_mfma_f32_32x32x16_bf16 {vr(DT+16*k,16)}, {vr(VA)}, {vr(BT+8*k)}, 0")
            a.e(f"v_mfma_f32_32x32x16_bf16 {vr(DT+16*k,16)}, {vr(VA+4)}, {vr(BT+8*k+4)}, {vr(DT+16*k,16)}")
        a.e(f"v_and_b32 v32, 0xffff, v16\nv_lshrrev_b32 v33, 16, v16\nv_and_b32 v34, 0xffff, v17\nv_lshrrev_b32 v35, 16, v17")
        a.e(f"v_and_b32 v36, 0xffff, v18\nv_lshrrev_b32 v37, 16, v18\nv_and_b32 v38, 0xffff, v19\nv_lshrrev_b32 v39, 16, v19")
        for i in range(4): a.e(f"v_add_u32 v{36+i}, {CP}, v{36+i}")
        a.e("s_nop 7")
        for k in range(6):
            for q in range(4):
                d = DT + 16 * k + 4 * q
                a.e(f"v_cvt_pk_bf16_f32 v{d}, v{d}, v{d+1}\nv_cvt_pk_bf16_f32 v{d+1}, v{d+2}, v{d+3}")
                a.lds(f"ds_write_b64 v11, {vr(d,2)} offset:{k*128*CPITCH + q*16}", 'cw')
        XG = 224
        GT = 56
        def gather(base, pitch, dst, isx, tag):
            def rd(i):
                for k in range(4):
                    a.lds(f"ds_read_u16_d16_hi v{GT + 4*(i%3) + k}, v{base+k} offset:{i*pitch}", (tag, i))
            for i in range(12): a.e(f"v_mov_b32 v{GT+i}, 0")
            rd(0); rd(1)
            for i in range(26):
                if i + 2 < 26: rd(i + 2)
                a.wait_lg((tag, i))
                t = GT + 4 * (i % 3)
                if isx:
                    a.e(f"v_fma_f32 v12, v{t+1}, v20, v{t}\nv_fma_f32 v13, v{t+3}, v21, v{t+2}")
                else:
                    a.e(f"v_add_f32 v12, v{t+1}, v{t}\nv_add_f32 v13, v{t+3}, v{t+2}")
                a.e(f"v_cvt_pk_bf16_f32 v{dst+i}, v12, v13")
        gather(32, 1352, XG, True, 'xg')
        a.wait_lg0()
        a.e("s_barrier")
        self.stamp()
        a.e(f"s_cmp_eq_u32 s{S_WAVE}, 3\ns_cbranch_scc1 L_p3w3")
        a.e(f"v_lshrrev_b32 v2, 3, v1\nv_mul_u32_u24 v2, {FP}, v2\nv_bfe_u32 v3, v1, 2, 1\nv_mul_u32_u24 v3, 528, v3\nv_add_u32 v2, v2, v3\nv_and_b32 v3, 3, v1\nv_lshl_add_u32 v2, v3, 2, v2")
        a.e(f"v_add_u32 v8, {FX}, v2\nv_add_u32 v9, {FY}, v2\nv_mov_b32 v3, {VL}")
        a.e("v_cmp_gt_u32 vcc, 176, v1\ns_nop 1\nv_cndmask_b32 v8, v3, v8, vcc")
        a.e("v_cmp_ne_u32 vcc, 187, v1\ns_nop 1\nv_cndmask_b32 v9, v3, v9, vcc\nv_mov_b32 v14, 0")
        for i in range(32):
            a.lds(f"ds_write_b32 v8, v{XG+i if i < 26 else 14} offset:{16*i}", 'fw')
        gather(36, 26 * CPITCH, 128, False, 'yg')
        for i in range(32):
            a.lds(f"ds_write_b32 v9, v{128+i if i < 26 else 14} offset:{16*i}", 'fw')
        a.e("s_branch L_p3done")
        a.label("L_p3w3")
        a.e(f"v_lshlrev_b32 v2, 4, v0\nv_add_u32 v2, {FY + 23*FP + 12}, v2\ns_mov_b32 exec_hi, 0")
        a.e("ds_write_b32 v2, v23")
        a.e("s_mov_b64 exec, -1")
        a.label("L_p3done")
        a.wait_lg0()
        a.e("s_barrier")
        self.stamp()
        a.e(f"v_and_b32 v8, 31, v0\nv_lshrrev_b32 v9, 5, v0\nv_mul_u32_u24 v2, 528, v9\nv_lshl_add_u32 v2, v8, 4, v2\nv_add_u32 v2, {FX}, v2")
        for f in range(46):
            a.lds(f"ds_read_b128 {ar(4*f)}, v2 offset:{f*FP}", 'fr')
        AX = lambda s: ar(4 * s)
        AY = lambda s: ar(88 + 4 * s)
        AD = {2: 8 + 2, -6: 11, 1: 12, -1: 13}
        a.e(f"v_lshlrev_b32 v3, 1, v8\nv_add_u32 v3, s{S_XB}, v3")
        for dlt, r in AD.items():
            a.e(f"v_mul_i32_i24 v{r}, {dlt*64}, v9\nv_add_u32 v{r}, v{r}, v3")
        RS = [32, 64]
        ZT = 96; BF = [112, 116]; BL = 120
        ACC = [[128, 144], [160, 176]]
        V_PA, V_S = 14, 15
        a.e(f"s_lshl_b32 s{S_T0}, s{S_WAVE}, 8\nv_lshlrev_b32 v{V_PA}, 2, v0\nv_add_u32 v{V_PA}, s{S_T0}, v{V_PA}")
        for i in range(26): a.e(f"v_mov_b32 v{RS[0]+i}, 0\nv_mov_b32 v{RS[1]+i}, 0")
        a.e(f"v_mov_b32 v{BL+3}, 0x3f80")
        def rread(par, r):
            a.e(f"ds_read_u16_d16_hi v{RS[par]+r}, v{AD[sigma(r)-r]} offset:{par*2048 + r*64}")
        a.wait_lg0()
        for r in range(26):
            if r == 13: a.e("s_waitcnt lgkmcnt(0)")
            rread(0, r)
        a.e("s_waitcnt lgkmcnt(0)")
        def half(par, f, hh):
            R = RS[par]
            if f < 22:
                z = ZT + 4 * hh
                ops = []
                for k in range(4):
                    x, y = slots[8 * f + 4 * hh + k]
                    ops.append(f"v_mul_f32 v{z+k}, v{R+x}, v{R+y}")
                b = BF[f % 2] + 2 * hh
                ops.append(f"v_cvt_pk_bf16_f32 v{b}, v{z}, v{z+1}")
                ops.append(f"v_cvt_pk_bf16_f32 v{b+1}, v{z+2}, v{z+3}")
                return ops
            if f == 22:
                b = BF[0] + 2 * hh
                l = lin[4 * hh: 4 * hh + 4]
                return [f"v_cvt_pk_bf16_f32 v{b}, v{R+l[0]}, v{R+l[1]}", f"v_cvt_pk_bf16_f32 v{b+1}, v{R+l[2]}, v{R+l[3]}"]
            if hh == 0:
                l = lin[8:12]
                return [f"v_cvt_pk_bf16_f32 v{BL}, v{R+l[0]}, v{R+l[1]}", f"v_cvt_pk_bf16_f32 v{BL+1}, v{R+l[2]}, v{R+l[3]}"]
            return [f"v_cvt_pk_bf16_f32 v{BL+2}, v{R+lin[12]}, 0"]
        def bfrag(f): return vr(BL) if f == 23 else vr(BF[f % 2])
        for op in half(0, 0, 0) + half(0, 0, 1) + half(0, 1, 0): a.e(op)
        a.e(f"s_mov_b32 s{S_CNT}, 0\ns_waitcnt vmcnt(0)")
        self.stamp()
        a.label("L_cloop")
        def finish_ops(par):
            X, Y = ACC[par]
            ops = [f"v_mul_f32 v{V_S}, v{X}, v{Y}"] + [f"v_fmac_f32 v{V_S}, v{X+i}, v{Y+i}" for i in range(1, 16)]
            ops.append(f"ds_write_b32 v{V_PA}, v{V_S}")
            ops.append(f"v_add_u32 v{V_PA}, 1024, v{V_PA}")
            return ops
        for par in range(2):
            X, Y = ACC[par]
            extras = {}
            def put(st, pos, op): extras.setdefault((st, pos), []).append(op)
            fo = finish_ops(1 - par)
            for i, op in enumerate(fo): put(2 + i // 2, i % 2, op)
            put(0, 0, "s_waitcnt vmcnt(2)")
            for u in range(2):
                put(0, 1, f"buffer_load_dword v{IDXR[1-par][u]}, v{V_IO}, {sr(SRD_IDX)}, s{S_IO} offen offset:{64*u}")
            put(0, 1, f"s_add_u32 s{S_IO}, s{S_IO}, 104")
            for u in range(2):
                put(1, u, f"s_add_u32 m0, s{S_XB}, {par*2048 + u*1024}")
                put(1, u, f"v_lshl_add_u32 v{IDXR[par][u]}, v{IDXR[par][u]}, 8, v{V_XL}")
                put(1, u, f"buffer_load_dwordx4 v{IDXR[par][u]}, {sr(SRD_TAB)}, 0 offen lds")
            put(11, 0, "s_waitcnt vmcnt(4)")
            for r in range(26):
                st = 11 + r // 3
                put(st, r % 2, f"ds_read_u16_d16_hi v{RS[1-par]+r}, v{AD[sigma(r)-r]} offset:{(1-par)*2048 + r*64}")
                if r in (11, 20): put(st, 1, "s_waitcnt lgkmcnt(4)")
            put(21, 1, "s_waitcnt lgkmcnt(0)")
            def fr(f, hh):
                return half(par, f, hh) if f < 24 else half(1 - par, f - 24, hh)
            for st in range(24):
                if st < 22:
                    c = "0" if st == 0 else vr(X, 16)
                    a.e(f"v_mfma_f32_32x32x16_bf16 {vr(X,16)}, {AX(st)}, {bfrag(st)}, {c}")
                for op in fr(st + 1, 1): a.e(op)
                for op in extras.get((st, 0), []): a.e(op)
                c = "0" if st == 0 else vr(Y, 16)
                a.e(f"v_mfma_f32_32x32x16_bf16 {vr(Y,16)}, {AY(st)}, {bfrag(st)}, {c}")
                for op in extras.get((st, 1), []): a.e(op)
                for op in fr(st + 2, 0): a.e(op)
        a.e(f"s_add_u32 s{S_CNT}, s{S_CNT}, 1\ns_cmp_lt_u32 s{S_CNT}, 11\ns_cbranch_scc1 L_cloop")
        a.e("s_nop 7\ns_nop 3")
        for op in finish_ops(1): a.e(op)
        a.e("s_waitcnt vmcnt(0) lgkmcnt(0)")
        a.e("s_barrier")
        self.stamp()
        a.e("v_and_b32 v2, 31, v1\nv_lshrrev_b32 v3, 5, v1\nv_min_u32 v8, 21, v2\nv_lshlrev_b32 v8, 10, v8\nv_lshl_add_u32 v8, v3, 7, v8")
        for i in range(8): a.e(f"ds_read_b128 {vr(32+4*i)}, v8 offset:{1024+16*i}")
        a.e(f"s_load_dword s17, s[{S_BO}:{S_BO+1}], 0")
        srd(a, SRD_OUT, S_OUT, 2048)
        a.e("s_waitcnt lgkmcnt(0)")
        for st in (16, 8, 4, 2, 1):
            for i in range(st): a.e(f"v_add_f32 v{32+i}, v{32+i}, v{32+st+i}")
        a.e("s_mov_b64 exec, s[76:77]")
        a.e(f"v_mov_b32 v70, 0\nv_mov_b32 v71, 1\ns_mov_b32 s{S_CNT}, 0")
        a.label("L_poll")
        for k in range(3):
            a.e(f"s_mov_b32 s{S_T0}, {k*65536}")
            a.e(f"buffer_load_dwordx2 v[{64+2*k}:{65+2*k}], v{V_G}, {sr(SRD_WS)}, s{S_T0} offen sc1")
        a.e(f"s_cmp_lg_u32 s{S_WAVE}, 0\ns_cbranch_scc1 L_poll3")
        a.e(f"s_mov_b32 s{S_T0}, {3*65536}")
        a.e(f"buffer_load_dwordx2 v[70:71], v{V_G}, {sr(SRD_WS)}, s{S_T0} offen sc1")
        a.label("L_poll3")
        a.e("s_waitcnt vmcnt(0)")
        a.e("v_and_b32 v72, v65, v67\nv_and_b32 v73, v69, v71\nv_and_b32 v72, v72, v73\nv_cmp_ne_u32 vcc, 1, v72")
        a.e(f"s_cbranch_vccz L_polldone\ns_sleep 2\ns_add_u32 s{S_CNT}, s{S_CNT}, 1\ns_cmp_lt_u32 s{S_CNT}, 20000\ns_cbranch_scc1 L_poll")
        a.label("L_polldone")
        a.e("v_add_f32 v64, v64, v66\nv_add_f32 v68, v68, v70\nv_add_f32 v64, v64, v68\nv_add_f32 v32, v32, v64")
        a.e("s_mov_b64 exec, -1")
        a.e("v_lshlrev_b32 v8, 2, v1\nds_write_b32 v8, v32 offset:32768\ns_waitcnt lgkmcnt(0)\ns_barrier")
        a.e(f"s_cmp_lg_u32 s{S_WAVE}, 0\ns_cbranch_scc1 L_cend")
        a.e("v_lshlrev_b32 v8, 2, v2")
        for i in range(8): a.e(f"ds_read_b32 v{32+i}, v8 offset:{32768+128*i}")
        a.e("s_lshl_b32 s17, s17, 16\ns_waitcnt lgkmcnt(0)")
        for st in (4, 2, 1):
            for i in range(st): a.e(f"v_add_f32 v{32+i}, v{32+i}, v{32+st+i}")
        a.e("v_add_f32 v32, s17, v32\nv_cvt_pk_bf16_f32 v32, v32, v32")
        a.e(f"v_add_u32 v8, s{S_R0}, v0\nv_lshlrev_b32 v8, 1, v8\nv_cmp_gt_u32 vcc, s{S_N}, v0\ns_and_b64 exec, exec, vcc")
        a.e(f"buffer_store_short v32, v8, {sr(SRD_OUT)}, 0 offen")
        a.e("s_mov_b64 exec, -1")
        a.label("L_cend")
        self.stamp()
        a.e(f"s_mov_b32 s{SRD_WS+2}, 0x1000000")
        self.dump_stamps()
        a.label("L_end")
        a.e("s_endpgm")
        from cinplan import table
        a.L.append(".p2align 6")
        a.L.append(".type L_tab,@object")
        a.label("L_tab")
        for row in table():
            a.L.append("    .long " + ", ".join(f"{x:#x}" for x in row))

    def run(self):
        self.header(); self.entry(); self.gemm(); self.cin()
        self.footer()
        return self.a.text()

if __name__ == '__main__':
    ap = argparse.ArgumentParser()
    ap.add_argument('-o', default='out.s')
    ap.add_argument('--stamps', action='store_true')
    ap.add_argument('--map', default='2x4')
    ap.add_argument('--order', default='lock')
    ap.add_argument('--noW', action='store_true')
    ap.add_argument('--noX', action='store_true')
    ap.add_argument('--noM', action='store_true')
    o = ap.parse_args()
    open(o.o, 'w').write(Gen(o).run())
```

```python
import sys, argparse
from asmlib import *
KN = 'standalone__deep_cross_xdeepfm__recsys_kernel'

S_IDX, S_TAB, S_WCIN, S_WCO, S_W1, S_B1, S_W2, S_BO, S_OUT, S_DBG, S_WS = 4, 6, 8, 10, 12, 14, 16, 18, 20, 22, 24
SRD_IDX, SRD_TAB, SRD_W1, SRD_B1, SRD_W2, SRD_WS, SRD_DBG = 28, 32, 36, 40, 44, 48, 52
S_ROW = 56
S_SELLO, S_SELHI = 64, 65
S_WAVE, S_MT, S_NT = 66, 67, 68
S_T0, S_T1, S_T2, S_T3 = 70, 71, 72, 73
S_PC = 74
S_ORD = 76
S_XB = 78
S_TS = 80
ROWB = 6656
IDXBASE = 131072
LDS_BYTES = 163840

V_XOFF = 2
V_WBASE, V_WOFF, V_IDXB, V_IDXA, V_LX0, V_LX1, V_FR0 = 6, 7, 8, 9, 10, 11, 12
V_T0, V_T1, V_T2 = 13, 14, 15
V_FR1 = 13
V_WT = 16
V_WRAW = 32
V_ACC = 128
A_X = 128

def acc(j, t):
    if t < 4: return vr(V_ACC + (t * 8 + j) * 4)
    return ar(((t - 4) * 8 + j) * 4)

def srd(a, d, ptr, nbytes):
    a.e(f"s_mov_b32 s{d}, s{ptr}\ns_mov_b32 s{d+1}, s{ptr+1}\ns_mov_b32 s{d+2}, {nbytes}\ns_mov_b32 s{d+3}, 0x00020000")

class Gen:
    def __init__(self, o):
        self.o = o
        self.a = Asm()
        self.nts = 0
    def stamp(self):
        if not self.o.stamps: return
        a = self.a
        a.e(f"s_memtime s[26:27]")
        a.wait_lg0()
        assert self.nts < 20
        a.e(f"s_mov_b32 s{S_TS+self.nts}, s26")
        self.nts += 1

    def header(self):
        a = self.a
        a.L.append(f"; @launch grid=(256,1,1) block=(256,1,1) lds={LDS_BYTES}")
        a.L.append('.amdgcn_target "amdgcn-amd-amdhsa--gfx950"')
        a.L.append(f".text\n.globl {KN}\n.p2align 8\n.type {KN},@function\n{KN}:")
    def footer(self):
        a = self.a
        a.L.append(f'''.section .rodata,"a"
.p2align 6
.amdhsa_kernel {KN}
  .amdhsa_next_free_vgpr 512
  .amdhsa_next_free_sgpr 102
  .amdhsa_accum_offset 256
  .amdhsa_group_segment_fixed_size 0
  .amdhsa_kernarg_size 88
  .amdhsa_user_sgpr_count 2
  .amdhsa_user_sgpr_kernarg_segment_ptr 1
  .amdhsa_system_sgpr_workgroup_id_x 1
.end_amdhsa_kernel''')

    def entry(self):
        a, o = self.a, self.o
        a.e("s_cmp_ge_u32 s2, 256\ns_cbranch_scc1 L_end")
        if o.stamps:
            a.e(f"s_memrealtime s[{S_TS+20}:{S_TS+21}]")
        self.stamp()
        a.e("s_load_dwordx16 s[4:19], s[0:1], 0\ns_load_dwordx4 s[20:23], s[0:1], 64\ns_load_dwordx2 s[24:25], s[0:1], 80")
        a.e(f"s_getpc_b64 s[{S_PC}:{S_PC+1}]")
        a.e(f"s_lshr_b32 s{S_T1}, s2, 3\ns_mul_i32 s{S_T0}, s{S_T1}, {20*128}\nv_min_u32 v1, 19, v0\nv_lshlrev_b32 v1, 7, v1\nv_add_u32 v1, s{S_T0}, v1")
        a.vmem(f"global_load_dword v{V_T2}, v1, s[{S_PC}:{S_PC+1}]", 'pf')
        a.e(f"s_mul_i32 s{S_T0}, s{S_T1}, {26*128}\nv_min_u32 v{V_T1}, 25, v0\nv_lshlrev_b32 v{V_T1}, 7, v{V_T1}\nv_add_u32 v{V_T1}, s{S_T0}, v{V_T1}\nv_min_u32 v{V_T1}, 105452, v{V_T1}")
        a.e("s_waitcnt lgkmcnt(0)")
        a.vmem(f"global_load_dword v{V_T2}, v{V_T1}, s[{S_WCIN}:{S_WCIN+1}]", 'pf')
        a.e("v_lshrrev_b32 v1, 6, v0\nv_and_b32 v0, 63, v0")
        a.e(f"v_readfirstlane_b32 s{S_WAVE}, v1")
        a.e(f"s_and_b32 s{S_T0}, s2, 7\ns_lshr_b32 s{S_T1}, s2, 3")
        a.e(f"s_cmp_lt_u32 s{S_T1}, 6\ns_cbranch_scc1 L_cin")

    def orders(self):
        o = self.o
        if o.order == 'lock':
            return [list(range(13))] * 4
        if o.order == 'win':
            res = []
            for rho in range(4):
                seq = []
                for w0, n in ((0, 4), (4, 4), (8, 5)):
                    seq += [w0 + (rho + i) % n for i in range(n)]
                res.append(seq)
            return res
        if o.order == 'slide':
            res = []
            for rho in range(4):
                seq = [rho]; done = {rho}
                for tau in range(1, 13):
                    if tau <= 9 and (tau - 1) % 4 == rho: b = tau + 3
                    else:
                        b = min(x for x in range(13) if x not in done and x <= tau + 2)
                    seq.append(b); done.add(b)
                res.append(seq)
            return res

    def gemm(self):
        a, o = self.a, self.o
        NS = 26
        a.e(f"s_sub_u32 s{S_T1}, s{S_T1}, 6")
        if o.map == '2x4':
            a.e(f"s_lshr_b32 s{S_T2}, s{S_T0}, 1\ns_mul_i32 s{S_T2}, s{S_T2}, 26\ns_add_u32 s{S_T2}, s{S_T2}, s{S_T1}")
            a.e(f"s_lshr_b32 s{S_NT}, s{S_T2}, 2\ns_and_b32 s{S_T2}, s{S_T2}, 3\ns_and_b32 s{S_T0}, s{S_T0}, 1\ns_lshl_b32 s{S_T0}, s{S_T0}, 2\ns_add_u32 s{S_MT}, s{S_T0}, s{S_T2}")
        elif o.map == '1x8':
            a.e(f"s_mul_i32 s{S_T2}, s{S_T0}, 26\ns_add_u32 s{S_T2}, s{S_T2}, s{S_T1}")
            a.e(f"s_lshr_b32 s{S_NT}, s{S_T2}, 3\ns_and_b32 s{S_MT}, s{S_T2}, 7")
        ords = self.orders()
        a.e(f"s_add_u32 s{S_T0}, s{S_MT}, s{S_NT}\ns_and_b32 s{S_T0}, s{S_T0}, 3")
        for rho in range(4):
            v = 0
            for i, b in enumerate(ords[rho]): v |= b << (4 * i)
            lo, hi = v & 0xffffffff, v >> 32
            if rho == 0:
                a.e(f"s_mov_b32 s{S_ORD}, {lo:#x}\ns_mov_b32 s{S_ORD+1}, {hi:#x}")
            else:
                a.e(f"s_cmp_eq_u32 s{S_T0}, {rho}\ns_cselect_b32 s{S_ORD}, {lo:#x}, s{S_ORD}\ns_cselect_b32 s{S_ORD+1}, {hi:#x}, s{S_ORD+1}")
        def getblk(dst, b):
            a.e(f"s_bfe_u32 s{dst}, s{S_ORD + b // 8}, {(4 * (b % 8)) | (4 << 16):#x}")
        for r in range(8):
            a.e(f"s_mov_b32 s{S_ROW+r}, {r*ROWB}")
        a.e(f"s_mov_b32 s{S_SELLO}, 0x05040100\ns_mov_b32 s{S_SELHI}, 0x07060302")
        a.e(f"v_and_b32 v{V_T0}, 15, v0\nv_lshrrev_b32 v{V_T1}, 4, v0")
        a.e(f"s_mul_i32 s{S_T0}, s{S_WAVE}, {64*ROWB}\ns_lshl_b32 s{S_T1}, s{S_NT}, 8\ns_add_u32 s{S_T0}, s{S_T0}, s{S_T1}")
        a.e(f"v_mul_u32_u24 v{V_WBASE}, {8*ROWB}, v{V_T1}")
        a.e(f"v_lshl_add_u32 v{V_WBASE}, v{V_T0}, 4, v{V_WBASE}")
        a.e(f"v_add_u32 v{V_WBASE}, s{S_T0}, v{V_WBASE}")
        a.e(f"s_and_b32 s{S_T0}, s{S_WAVE}, 1\ns_lshl_b32 s{S_T0}, s{S_T0}, 7")
        a.e(f"v_and_b32 v1, 7, v0\nv_xor_b32 v1, v1, v{V_T1}\nv_lshlrev_b32 v1, 4, v1\nv_add_u32 v{V_LX0}, s{S_T0}, v1\nv_xor_b32 v{V_LX1}, 64, v{V_LX0}")
        a.e(f"s_mul_i32 s{S_T0}, s{S_WAVE}, 3328\ns_lshr_b32 s{S_T1}, s{S_WAVE}, 1\ns_lshl_b32 s{S_T1}, s{S_T1}, 2\ns_add_u32 s{S_T0}, s{S_T0}, s{S_T1}\ns_add_u32 s{S_T0}, s{S_T0}, {IDXBASE}")
        a.e(f"v_lshrrev_b32 v1, 3, v0\nv_mul_u32_u24 v{V_IDXB}, 104, v1\nv_add_u32 v{V_IDXB}, s{S_T0}, v{V_IDXB}")
        a.e(f"s_lshl_b32 s{S_XB}, s{S_WAVE}, 15")
        a.e(f"v_lshrrev_b32 v1, 1, v{V_T0}\nv_xor_b32 v1, v1, v{V_T1}\nv_lshlrev_b32 v1, 4, v1\nv_lshl_add_u32 v1, v{V_T0}, 7, v1\nv_add_u32 v{V_FR0}, s{S_XB}, v1\nv_xor_b32 v{V_FR1}, 64, v{V_FR0}")
        a.e(f"v_lshlrev_b32 v1, 4, v0")
        a.e(f"s_lshl_b32 s{S_T1}, s{S_NT}, 8\nv_lshlrev_b32 v2, 6, v{V_T1}\nv_add_u32 v2, s{S_T1}, v2")
        a.e("s_waitcnt lgkmcnt(0)")
        self.stamp()
        srd(a, SRD_IDX, S_IDX, 1024 * 104)
        srd(a, SRD_W1, S_W1, 3328 * ROWB)
        srd(a, SRD_B1, S_B1, ROWB)
        a.e(f"s_mul_i32 s{S_T3}, s{S_MT}, 13312")
        for n in range(6):
            a.e(f"s_add_u32 s{S_T0}, s{S_WAVE}, {4*n}")
            a.e(f"s_sub_u32 s{S_T1}, s{S_T0}, 13\ns_cmp_lt_u32 s{S_T0}, 13\ns_cselect_b32 s{S_T1}, s{S_T0}, s{S_T1}")
            a.e(f"s_lshl_b32 s{S_T1}, s{S_T1}, 10\ns_add_u32 s{S_T1}, s{S_T1}, s{S_T3}")
            a.e(f"s_lshl_b32 s{S_T0}, s{S_T0}, 10\ns_add_u32 m0, s{S_T0}, {IDXBASE}\ns_nop 0")
            a.vmem(f"buffer_load_dwordx4 v1, {sr(SRD_IDX)}, s{S_T1} offen lds", 'idx')
        for r in range(4):
            a.vmem(f"buffer_load_dwordx4 {vr(V_WT+4*r)}, v2, {sr(SRD_B1)}, 0 offen offset:{16*r}", 'bias')
        srd(a, SRD_TAB, S_TAB, 100000 * 256)
        srd(a, SRD_W2, S_W2, ROWB)
        srd(a, SRD_WS, S_WS, 0x1000000)

        def waddr(s):
            if s >= NS: return
            if s % 2 == 0:
                getblk(S_T0, s // 2)
                a.e(f"s_mul_i32 s{S_T0}, s{S_T0}, {256*ROWB}")
                a.e(f"v_add_u32 v{V_WOFF}, s{S_T0}, v{V_WBASE}")
            else:
                a.e(f"v_add_u32 v{V_WOFF}, {32*ROWB}, v{V_WOFF}")
        def wload(s, r):
            if s >= NS: return
            if r == 0: waddr(s)
            if o.noW and s >= 3: return
            a.vmem(f"buffer_load_dwordx4 {vr(V_WRAW + (s % 3) * 32 + 4 * r)}, v{V_WOFF}, {sr(SRD_W1)}, s{S_ROW+r} offen {o.wflag}", ('w', s))
        for r in range(8): wload(0, r)
        for i in range(V_ACC + 64, 256): a.e(f"v_mov_b32 v{i}, 0")
        for i in range(128): a.e(f"v_accvgpr_write_b32 a{i}, 0")
        a.wait_vm('idx')
        a.e("s_barrier")
        self.stamp()

        NXO = 4
        def idxaddr(b):
            if b >= 13: return
            getblk(S_T1, b)
            a.e(f"s_lshl_b32 s{S_T1}, s{S_T1}, 3\nv_add_u32 v{V_IDXA}, s{S_T1}, v{V_IDXB}")
        def idxread(b, u):
            if b >= 13: return
            if u == 0: idxaddr(b)
            a.lds(f"ds_read_b32 v{V_XOFF + u % NXO}, v{V_IDXA} offset:{u*832}", ('i', b, u))
        def xdma(b, u):
            if b >= 13: return
            a.wait_lg(('i', b, u))
            r = V_XOFF + u % NXO
            a.e(f"s_add_u32 m0, s{S_XB}, {(b % 2) * 16384 + u * 1024}")
            a.e(f"v_lshl_add_u32 v{r}, v{r}, 8, v{V_LX0 if u % 2 == 0 else V_LX1}")
            if o.noX and b >= 2: return
            a.vmem(f"buffer_load_dwordx4 v{r}, {sr(SRD_TAB)}, 0 offen {o.xflag} lds", ('x', b, u))
        def xfrag(s, t):
            if s >= NS: return
            b, sub = s // 2, s % 2
            a.wait_vm([('x', b, 2 * t), ('x', b, 2 * t + 1)])
            a.lds(f"ds_read_b128 {ar(A_X + (s % 2) * 32 + 4 * t)}, v{V_FR0 if sub == 0 else V_FR1} offset:{(b % 2) * 16384 + t * 2048}", ('f', s, t))
        def xblock(b):
            for u in range(NXO): idxread(b, u)
            for u in range(16):
                xdma(b, u)
                if u + NXO < 16: idxread(b, u + NXO)
        xblock(0)
        for r in range(8): wload(1, r)
        xblock(1)
        for r in range(8): wload(2, r)
        a.wait_vm('bias')
        a.e(f"s_mov_b32 s{S_T0}, 0xffff0000")
        for j in range(8):
            for r in range(4):
                src = V_WT + 4 * r + j // 2
                d0 = V_ACC + (0 * 8 + j) * 4 + r; d1 = V_ACC + (1 * 8 + j) * 4 + r
                if j % 2 == 0: a.e(f"v_lshlrev_b32 v{d0}, 16, v{src}\nv_lshlrev_b32 v{d1}, 16, v{src}")
                else: a.e(f"v_and_b32 v{d0}, s{S_T0}, v{src}\nv_and_b32 v{d1}, s{S_T0}, v{src}")

        def perm(s, jp, i, buf):
            jj, p = i // 4, i % 4
            a.wait_vm(('w', s))
            base = V_WRAW + (s % 3) * 32
            lo = base + 4 * (2 * p) + jp; hi = base + 4 * (2 * p + 1) + jp
            sel = S_SELLO if jj == 0 else S_SELHI
            a.e(f"v_perm_b32 v{V_WT + 8*buf + 4*jj + p}, v{hi}, v{lo}, s{sel}")
        def mfma(s, j, t, buf):
            a.wait_lg(('f', s, t))
            if o.noM: return
            a.e(f"v_mfma_f32_16x16x32_bf16 {acc(j,t)}, {vr(V_WT + 8*buf + 4*(j%2))}, {ar(A_X + (s % 2) * 32 + 4 * t)}, {acc(j,t)}")

        for i in range(8): perm(0, 0, i, 0)
        for t in range(8): xfrag(0, t)
        self.stamp()
        PERMPOS = [0, 2, 4, 6, 8, 10, 12, 13]
        LDPOS = [1, 5, 9, 14]
        MISCPOS = [3, 7, 11, 15]
        gi = 0
        for s in range(NS - 1):
            b, sub = s // 2, s % 2
            a.c(f"---- step {s}")
            if s and s % 2 == 0: self.stamp()
            for g in range(4):
                fill = {k: [] for k in range(16)}
                buf = gi % 2
                ns, ng = (s, g + 1) if g < 3 else (s + 1, 0)
                for i in range(8):
                    fill[PERMPOS[i]].append(lambda ns=ns, ng=ng, i=i, nb=1 - buf: perm(ns, ng, i, nb))
                if g == 3:
                    for i in range(4): fill[LDPOS[i]].append(lambda i=i: wload(s + 3, i))
                if g == 0 and s >= 1:
                    for i in range(4): fill[LDPOS[i]].append(lambda i=i: wload(s + 2, 4 + i))
                if s >= 1:
                    B = (s + 3) // 2
                    u0 = 0 if sub == 1 else 8
                    if g in (0, 1):
                        for i in range(4): fill[MISCPOS[i]].append(lambda B=B, u=u0 + 4 * g + i: idxread(B, u))
                    if g in (1, 2):
                        for i in range(4): fill[LDPOS[i]].append(lambda B=B, u=u0 + 4 * (g - 1) + i: xdma(B, u))
                if g in (2, 3):
                    for i in range(4): fill[MISCPOS[i]].append(lambda t=4 * (g - 2) + i: xfrag(s + 1, t))
                m = 0
                for t in range(8):
                    for jj in range(2):
                        mfma(s, 2 * g + jj, t, buf)
                        for f in fill[m]: f()
                        m += 1
                gi += 1
        s = NS - 1
        a.c("---- last step")
        W2R = V_WRAW + ((s + 1) % 3) * 32
        a.e(f"v_lshrrev_b32 v{V_T1}, 4, v0\ns_lshl_b32 s{S_T1}, s{S_NT}, 8\nv_lshlrev_b32 v2, 6, v{V_T1}\nv_add_u32 v2, s{S_T1}, v2")
        for r in range(4):
            a.vmem(f"buffer_load_dwordx4 {vr(W2R+4*r)}, v2, {sr(SRD_W2)}, 0 offen offset:{16*r}", 'w2')
        srd(a, SRD_DBG, S_DBG, 192)
        a.e(f"v_lshlrev_b32 v{V_T2}, 2, v0")
        a.vmem(f"buffer_load_dword v{V_WOFF}, v{V_T2}, {sr(SRD_DBG)}, 0 offen sc1", 'flag')
        a.e(f"s_lshl_b32 s{S_T0}, s{S_WAVE}, 15\nv_lshlrev_b32 v1, 4, v0\nv_add_u32 v3, s{S_T0}, v1")
        a.e(f"s_xor_b32 s{S_T0}, s{S_T0}, 0x10000\nv_add_u32 v4, s{S_T0}, v1")
        a.e(f"s_add_u32 s{S_T1}, s{S_WAVE}, 1\ns_and_b32 s{S_T1}, s{S_T1}, 3\ns_lshl_b32 s{S_T1}, s{S_T1}, 15\nv_add_u32 v5, s{S_T1}, v1")
        pend = []
        cnt = 0
        def flushw(force=False):
            while pend and (force or pend[0][0] <= cnt):
                _, j, t = pend.pop(0)
                a.lds(f"ds_write_b128 v3, {acc(j,t)} offset:{((t-4)*8+j)*1024}", 'r1w')
                if not force: break
        for half in (1, 0):
            for g in range(4):
                buf = gi % 2
                nxt = (g + 1) if g < 3 else (0 if half == 1 else None)
                m = 0
                for t in range(4 * half, 4 * half + 4):
                    for jj in range(2):
                        mfma(s, 2 * g + jj, t, buf)
                        cnt += 1
                        if half == 1: pend.append((cnt + 8, 2 * g + jj, t))
                        if nxt is not None:
                            if m < 6: perm(s, nxt, m, 1 - buf)
                            if m == 5: perm(s, nxt, 6, 1 - buf)
                            if m == 6: perm(s, nxt, 7, 1 - buf)
                        flushw()
                        m += 1
                gi += 1
        flushw(True)
        self.stamp()
        a.wait_lg0()
        a.e("s_barrier")
        T = [V_WRAW + (s % 3) * 32 + 4 * i for i in range(8)] + [V_WRAW + ((s + 2) % 3) * 32 + 4 * i for i in range(6)]
        def exch(addr, tiles, tag, post):
            q = []
            tf = list(T)
            it = 0
            n = len(tiles)
            done = 0
            while done < n:
                while it < n and tf and len(q) < 6:
                    tr = tf.pop(0)
                    a.lds(f"ds_read_b128 {vr(tr)}, v{addr} offset:{tiles[it][0]}", (tag, it))
                    q.append((it, tr)); it += 1
                i, tr = q.pop(0)
                a.wait_lg((tag, i))
                for r in range(4):
                    a.e(f"v_add_f32 v{tiles[i][1]+r}, v{tiles[i][1]+r}, v{tr+r}")
                tf.append(tr)
                post(i)
                done += 1
        tilesQ1 = [(((t) * 8 + j) * 1024, V_ACC + (t * 8 + j) * 4) for t in (2, 3) for j in range(8)]
        tilesQ0 = [(((t) * 8 + j) * 1024, V_ACC + (t * 8 + j) * 4) for t in (0, 1) for j in range(8)]
        def post1(i):
            if i < 16:
                a.lds(f"ds_write_b128 v4, {vr(tilesQ1[i][1])} offset:{tilesQ1[i][0]}", 'r2w')
        exch(4, tilesQ1 + tilesQ0, 'r1', post1)
        self.stamp()
        a.wait_lg0()
        a.e("s_barrier")
        tiles2 = [(tilesQ1[i][0], tilesQ0[i][1]) for i in range(16)]
        exch(5, tiles2, 'r2', lambda i: None)
        self.stamp()
        W2F = V_ACC + 64
        a.wait_vm('w2')
        a.e(f"s_mov_b32 s{S_T0}, 0xffff0000")
        for j in range(8):
            for r in range(4):
                src = W2R + 4 * r + j // 2
                d = W2F + j * 4 + r
                if j % 2 == 0: a.e(f"v_lshlrev_b32 v{d}, 16, v{src}")
                else: a.e(f"v_and_b32 v{d}, s{S_T0}, v{src}")
        import struct, math
        def f2u(x): return struct.unpack('<I', struct.pack('<f', x))[0]
        k1 = -2.0 * math.sqrt(2.0 / math.pi) * math.log2(math.e)
        k2 = k1 * 0.044715
        a.e(f"s_mov_b32 s{S_T1}, {f2u(k2):#x}\nv_mov_b32 v6, {f2u(k1):#x}")
        a.e("v_mov_b32 v8, 0\nv_mov_b32 v9, 0")
        TT = V_ACC + 96
        G = 8
        for t in range(2):
            for e0 in range(0, 32, G):
                xs = [V_ACC + t * 32 + e0 + i for i in range(G)]
                ws = [W2F + e0 + i for i in range(G)]
                tm = [TT + i for i in range(G)]
                for i in range(G): a.e(f"v_mul_f32 v{tm[i]}, v{xs[i]}, v{xs[i]}")
                for i in range(G): a.e(f"v_fma_f32 v{tm[i]}, v{tm[i]}, s{S_T1}, v6")
                for i in range(G): a.e(f"v_mul_f32 v{tm[i]}, v{tm[i]}, v{xs[i]}")
                for i in range(G): a.e(f"v_exp_f32 v{tm[i]}, v{tm[i]}")
                for i in range(G): a.e(f"v_mul_f32 v{xs[i]}, v{xs[i]}, v{ws[i]}")
                for i in range(G): a.e(f"v_add_f32 v{tm[i]}, 1.0, v{tm[i]}")
                for i in range(G): a.e(f"v_rcp_f32 v{tm[i]}, v{tm[i]}")
                a.e("s_nop 0")
                for i in range(G): a.e(f"v_fmac_f32 v{8+t}, v{xs[i]}, v{tm[i]}")
        a.e("s_nop 1\nv_permlane32_swap_b32 v8, v9\ns_nop 1\nv_add_f32 v8, v8, v9\nv_mov_b32 v9, v8\ns_nop 1\nv_permlane16_swap_b32 v8, v9\ns_nop 1\nv_add_f32 v8, v8, v9")
        a.e(f"v_lshrrev_b32 v1, 5, v0\nv_lshlrev_b32 v1, 4, v1\nv_and_b32 v2, 15, v0\nv_add_u32 v1, v1, v2")
        a.e(f"s_lshl_b32 s{S_T0}, s{S_MT}, 7\ns_lshl_b32 s{S_T1}, s{S_WAVE}, 5\ns_add_u32 s{S_T0}, s{S_T0}, s{S_T1}\ns_lshl_b32 s{S_T1}, s{S_NT}, 10\ns_add_u32 s{S_T0}, s{S_T0}, s{S_T1}")
        a.e(f"v_add_u32 v1, s{S_T0}, v1\nv_lshlrev_b32 v1, 3, v1\nv_mov_b32 v9, 1")
        a.wait_vm('flag')
        a.e(f"s_mov_b32 exec_lo, -1\ns_mov_b32 exec_hi, 0xffff\ns_mov_b32 s{S_T2}, 0")
        a.label("L_fchk")
        a.e(f"v_cmp_ne_u32 vcc, 1, v{V_WOFF}\ns_cbranch_vccz L_fok\ns_sleep 2")
        a.e(f"buffer_load_dword v{V_WOFF}, v{V_T2}, {sr(SRD_DBG)}, 0 offen sc1\ns_waitcnt vmcnt(0)\ns_add_u32 s{S_T2}, s{S_T2}, 1\ns_cmp_lt_u32 s{S_T2}, 20000\ns_cbranch_scc1 L_fchk")
        a.label("L_fok")
        a.e("s_mov_b32 exec_lo, 0xffff\ns_mov_b32 exec_hi, 0xffff")
        a.vmem(f"buffer_store_dwordx2 v[8:9], v1, {sr(SRD_WS)}, 0 offen sc1", 'st')
        a.e("s_mov_b64 exec, -1")
        self.stamp()
        self.dump_stamps()
        a.e("s_endpgm")

    def dump_stamps(self):
        a = self.a
        if not self.o.stamps: return
        a.e(f"s_memrealtime s[26:27]\ns_waitcnt lgkmcnt(0)")
        a.e(f"s_lshl_b32 s{S_T0}, s2, 2\ns_add_u32 s{S_T0}, s{S_T0}, s{S_WAVE}\ns_lshl_b32 s{S_T0}, s{S_T0}, 7\ns_add_u32 s{S_T0}, s{S_T0}, 0x100000")
        a.e(f"v_mov_b32 v1, s{S_T0}")
        for i in range(self.nts):
            a.e(f"s_sub_u32 s{S_T1}, s{S_TS+i}, s{S_TS}\nv_mov_b32 v2, s{S_T1}")
            a.e(f"buffer_store_dword v2, v1, {sr(SRD_WS)}, 0 offen offset:{4*i}")
        a.e(f"v_mov_b32 v2, {self.nts}\nbuffer_store_dword v2, v1, {sr(SRD_WS)}, 0 offen offset:116")
        a.e(f"v_mov_b32 v2, s{S_TS+20}\nbuffer_store_dword v2, v1, {sr(SRD_WS)}, 0 offen offset:120")
        a.e(f"v_mov_b32 v2, s26\nbuffer_store_dword v2, v1, {sr(SRD_WS)}, 0 offen offset:124")

    def cin(self):
        a, o = self.a, self.o
        from cinplan import build, sigma, CPITCH
        slots, lin = build()
        a.vm = []; a.lg = []
        nts_save = self.nts; self.nts = 1
        W2L, FX, FY, CP, VL, W2V, XS = 35152, 35328, 58560, 84096, 139392, 141440, 147456
        FP = 1056
        MXY = 145408
        SRD_WC, SRD_OUT, SRD_WCO = SRD_W1, SRD_B1, SRD_W2
        S_R0, S_N, S_W3, S_IO, S_CNT = 67, 68, 56, 69, 79
        a.label("L_cin")
        a.vm.append('pf')
        a.e(f"s_mul_i32 s{S_R0}, s2, 21\ns_min_u32 s{S_T0}, s2, 16\ns_add_u32 s{S_R0}, s{S_R0}, s{S_T0}")
        a.e(f"s_cmp_lt_u32 s2, 16\ns_cselect_b32 s{S_N}, 22, 21")
        a.e(f"s_lshl_b32 s{S_T0}, s{S_WAVE}, 6\nv_add_u32 v1, s{S_T0}, v0")
        a.e(f"s_getpc_b64 s[{S_PC}:{S_PC+1}]")
        a.label("L_pc1")
        a.e(f"s_add_u32 s{S_PC}, s{S_PC}, L_tab-L_pc1\ns_addc_u32 s{S_PC+1}, s{S_PC+1}, 0")
        a.e("v_lshlrev_b32 v2, 5, v1")
        a.vmem(f"global_load_dwordx4 v[16:19], v2, s[{S_PC}:{S_PC+1}]", 'tab')
        a.vmem(f"global_load_dwordx2 v[20:21], v2, s[{S_PC}:{S_PC+1}] offset:16", 'tab')
        a.e("s_waitcnt lgkmcnt(0)")
        self.stamp()
        a.e(f"s_load_dwordx8 s[56:63], s[{S_WCO}:{S_WCO+1}], 104\ns_load_dwordx4 s[12:15], s[{S_WCO}:{S_WCO+1}], 136\ns_load_dword s16, s[{S_WCO}:{S_WCO+1}], 152")
        a.e(f"s_load_dword s17, s[{S_BO}:{S_BO+1}], 0") if False else None
        w3reg = list(range(56, 64)) + [12, 13, 14, 15, 16]
        srd(a, SRD_WC, S_WCIN, 105456)
        srd(a, SRD_IDX, S_IDX, 1024 * 104)
        srd(a, SRD_WCO, S_WCO, 156)
        a.e("v_lshlrev_b32 v2, 3, v1\nv_add_u32 v2, 70304, v2\nv_mov_b32 v3, 0x7ff00000\nv_cmp_gt_u32 vcc, 169, v1\ns_nop 1\nv_cndmask_b32 v2, v3, v2, vcc")
        W3R = 128
        for g in range(26):
            if g and g % 3 == 0: a.e(f"v_add_u32 v2, {3*1352}, v2")
            a.vmem(f"buffer_load_dwordx2 {vr(W3R+2*g,2)}, v2, {sr(SRD_WC)}, 0 offen offset:{(g%3)*1352}", ('w3', g))
        a.e("v_lshlrev_b32 v2, 1, v0\nv_cmp_gt_u32 vcc, 26, v0\ns_nop 1\nv_cndmask_b32 v2, v3, v2, vcc")
        a.vmem(f"buffer_load_ushort v22, v2, {sr(SRD_WCO)}, 0 offen offset:52", 'w12')
        a.vmem(f"buffer_load_ushort v23, v2, {sr(SRD_WCO)}, 0 offen", 'w12')
        srd(a, SRD_TAB, S_TAB, 100000 * 256)
        srd(a, SRD_WS, S_WS, 0x1000000)
        V_IO = 4
        a.e(f"v_and_b32 v{V_IO}, 0xfc, v0\ns_mul_i32 s{S_IO}, s{S_R0}, 104")
        IDXR = [[24, 25], [26, 27]]
        def idxload(par):
            for u in range(2):
                a.vmem(f"buffer_load_dword v{IDXR[par][u]}, v{V_IO}, {sr(SRD_IDX)}, s{S_IO} offen offset:{64*u}", ('ci', par))
            a.e(f"s_add_u32 s{S_IO}, s{S_IO}, 104")
        idxload(0); idxload(1)
        a.e(f"v_lshlrev_b32 v2, 4, v0\ns_lshl_b32 m0, s{S_WAVE}, 10")
        for k in range(20):
            if k: a.e("s_add_u32 m0, m0, 4096")
            a.e("s_nop 0")
            a.vmem(f"buffer_load_dwordx4 v2, {sr(SRD_WC)}, m0 offen lds", 'wd')
        V_G = 5
        a.e(f"v_and_b32 v2, 31, v1\nv_lshrrev_b32 v3, 5, v1\nv_cmp_gt_u32 s[76:77], s{S_N}, v2\nv_lshl_add_u32 v{V_G}, v3, 10, v2\nv_add_u32 v{V_G}, s{S_R0}, v{V_G}\nv_lshlrev_b32 v{V_G}, 3, v{V_G}")
        a.e("v_mov_b32 v28, 0\nv_mov_b32 v29, 0")
        a.e(f"s_mov_b32 s{SRD_WS+2}, {26*1024*8}")
        a.e("s_mov_b64 exec, s[76:77]")
        for k in range(4):
            a.e(f"s_mov_b32 s{S_T0}, {k*65536}")
            a.vmem(f"buffer_store_dwordx2 v[28:29], v{V_G}, {sr(SRD_WS)}, s{S_T0} offen sc1", 'clr')
        a.e("s_mov_b64 exec, -1")
        V_XL = 6
        a.e(f"s_lshl_b32 s{S_T0}, s{S_WAVE}, 6\nv_and_b32 v{V_XL}, 3, v0\nv_lshlrev_b32 v{V_XL}, 4, v{V_XL}\nv_add_u32 v{V_XL}, s{S_T0}, v{V_XL}")
        a.e(f"s_lshl_b32 s{S_XB}, s{S_WAVE}, 12\ns_add_u32 s{S_XB}, s{S_XB}, {XS}")
        def xdma(par):
            for u in range(2):
                a.e(f"s_add_u32 m0, s{S_XB}, {par*2048 + u*1024}")
                a.e(f"v_lshl_add_u32 v{IDXR[par][u]}, v{IDXR[par][u]}, 8, v{V_XL}")
                a.vmem(f"buffer_load_dwordx4 v{IDXR[par][u]}, {sr(SRD_TAB)}, 0 offen lds", ('cx', par))
        a.e("s_waitcnt lgkmcnt(0)")
        a.e("v_mov_b32 v8, 0\nv_mov_b32 v9, 0\nv_mov_b32 v10, 0\nv_mov_b32 v11, 0")
        a.e(f"s_mov_b32 s{S_T3}, 0xffff0000")
        for g in range(26):
            sw = w3reg[g // 2]
            if g % 2 == 0: a.e(f"s_lshl_b32 s{S_T0}, s{sw}, 16")
            else: a.e(f"s_and_b32 s{S_T0}, s{sw}, 0xffff0000")
            a.wait_vm(('w3', g))
            r = W3R + 2 * g
            a.e(f"v_lshlrev_b32 v12, 16, v{r}\nv_and_b32 v13, s{S_T3}, v{r}\nv_lshlrev_b32 v14, 16, v{r+1}\nv_and_b32 v15, s{S_T3}, v{r+1}")
            a.e(f"v_fmac_f32 v8, s{S_T0}, v12\nv_fmac_f32 v9, s{S_T0}, v13\nv_fmac_f32 v10, s{S_T0}, v14\nv_fmac_f32 v11, s{S_T0}, v15")
        a.e("v_cvt_pk_bf16_f32 v8, v8, v9\nv_cvt_pk_bf16_f32 v9, v10, v11")
        a.e(f"v_lshlrev_b32 v2, 3, v1\nv_add_u32 v2, {VL}, v2")
        a.lds("ds_write_b64 v2, v[8:9]", 'v')
        a.wait_vm('w12')
        a.e(f"v_mul_u32_u24 v2, 52, v0\nv_add_u32 v2, {W2V}, v2")
        a.lds("ds_write_b32 v2, v22", 'v')
        a.wait_vm(('ci', 1))
        xdma(0); xdma(1)
        a.e(f"v_mov_b32 v2, {MXY}")
        a.lds("ds_write_b64 v2, v[28:29]", 'v')
        a.wait_vm('wd')
        a.wait_lg0()
        a.e("s_barrier")
        self.stamp()
        idxload(0)
        a.e("v_and_b32 v8, 31, v0\nv_lshrrev_b32 v9, 5, v0")
        a.e(f"v_lshlrev_b32 v2, 1, v8\nv_add_u32 v2, {VL}, v2\nv_mov_b32 v3, {W2V}\nv_cmp_eq_u32 vcc, 26, v8\ns_nop 1\nv_cndmask_b32 v2, v2, v3, vcc")
        a.e(f"v_mov_b32 v3, {W2V+2}\nv_cmp_lt_u32 vcc, 26, v8\ns_nop 1\nv_cndmask_b32 v2, v2, v3, vcc")
        a.e("v_mul_u32_u24 v3, 416, v9\nv_add_u32 v2, v2, v3")
        VT = 32
        for i in range(16):
            ks, e = i // 8, i % 8
            a.lds(f"ds_read_u16 v{VT+i}, v2 offset:{(16*ks+e)*52}", ('vt', i))
        a.e("v_bfe_u32 v10, v0, 2, 2\nv_lshl_add_u32 v10, v9, 3, v10\nv_mul_u32_u24 v10, 1352, v10")
        a.e("v_bfe_u32 v11, v0, 4, 1\nv_lshl_add_u32 v10, v11, 5, v10\nv_and_b32 v11, 3, v0\nv_lshl_add_u32 v10, v11, 3, v10")
        a.e(f"s_lshl_b32 s{S_T0}, s{S_WAVE}, 6\ns_add_u32 s{S_T0}, s{S_T0}, {W2L}\nv_add_u32 v10, s{S_T0}, v10")
        a.e(f"s_mul_i32 s{S_T0}, s{S_WAVE}, {32*CPITCH}\ns_add_u32 s{S_T0}, s{S_T0}, {CP}\nv_mul_u32_u24 v11, {CPITCH}, v8\nv_lshl_add_u32 v11, v9, 3, v11\nv_add_u32 v11, s{S_T0}, v11")
        VA = 48
        for i in range(8):
            a.wait_lg(('vt', 2 * i + 1))
            a.e(f"v_lshl_or_b32 v{VA+i}, v{VT+2*i+1}, 16, v{VT+2*i}")
        BT = 56
        DT = 128
        for k in range(6):
            for q in range(4):
                ks, h4 = q // 2, q % 2
                a.lds(f"ds_read_b64_tr_b16 {vr(BT+8*k+2*q,2)}, v10 offset:{(16*ks+4*h4)*1352 + k*256}", ('bt', k))
        for k in range(6):
            a.wait_lg(('bt', k))
            a.e(f"v_mfma_f32_32x32x16_bf16 {vr(DT+16*k,16)}, {vr(VA)}, {vr(BT+8*k)}, 0")
            a.e(f"v_mfma_f32_32x32x16_bf16 {vr(DT+16*k,16)}, {vr(VA+4)}, {vr(BT+8*k+4)}, {vr(DT+16*k,16)}")
        a.e(f"v_and_b32 v32, 0xffff, v16\nv_lshrrev_b32 v33, 16, v16\nv_and_b32 v34, 0xffff, v17\nv_lshrrev_b32 v35, 16, v17")
        a.e(f"v_and_b32 v36, 0xffff, v18\nv_lshrrev_b32 v37, 16, v18\nv_and_b32 v38, 0xffff, v19\nv_lshrrev_b32 v39, 16, v19")
        for i in range(4): a.e(f"v_add_u32 v{36+i}, {CP}, v{36+i}")
        a.e(f"v_mov_b32 v40, 0\nv_mov_b32 v41, {MXY}\ns_nop 5")
        for k in range(6):
            vals = [DT + 16 * k + r for r in range(16) if r != 14]
            for i in range(0, 14, 2): a.e(f"v_max3_f32 v40, |v{vals[i]}|, |v{vals[i+1]}|, v40")
            a.e(f"v_max_f32 v40, |v{vals[14]}|, v40")
            for q in range(4):
                d = DT + 16 * k + 4 * q
                a.e(f"v_cvt_pk_bf16_f32 v{d}, v{d}, v{d+1}\nv_cvt_pk_bf16_f32 v{d+1}, v{d+2}, v{d+3}")
                a.lds(f"ds_write_b64 v11, {vr(d,2)} offset:{k*128*CPITCH + q*16}", 'cw')
        a.lds("ds_max_u32 v41, v40 offset:4", 'cw')
        GT = 56
        def gather(base, pitch, dst, isx, tag):
            def rd(i):
                for k in range(4):
                    a.lds(f"ds_read_u16_d16_hi v{GT + 4*(i%3) + k}, v{base+k} offset:{i*pitch}", (tag, i))
            for i in range(12): a.e(f"v_mov_b32 v{GT+i}, 0")
            rd(0); rd(1)
            for i in range(26):
                if i + 2 < 26: rd(i + 2)
                a.wait_lg((tag, i))
                t = GT + 4 * (i % 3)
                if isx:
                    a.e(f"v_fma_f32 v{dst+2*i}, v{t+1}, v20, v{t}\nv_fma_f32 v{dst+2*i+1}, v{t+3}, v21, v{t+2}")
                    a.e(f"v_max3_f32 v40, |v{dst+2*i}|, |v{dst+2*i+1}|, v40")
                else:
                    a.e(f"v_add_f32 v{dst+2*i}, v{t+1}, v{t}\nv_add_f32 v{dst+2*i+1}, v{t+3}, v{t+2}")
        XG = 72
        a.e("v_mov_b32 v40, 0")
        gather(32, 1352, XG, True, 'xg')
        a.lds("ds_max_u32 v41, v40", 'cw')
        a.wait_vm('clr')
        a.wait_lg0()
        a.e("s_barrier")
        self.stamp()
        a.lds("ds_read_b64 v[42:43], v41", 'mx')
        a.e(f"v_lshrrev_b32 v2, 3, v1\nv_mul_u32_u24 v2, {FP}, v2\nv_bfe_u32 v3, v1, 2, 1\nv_mul_u32_u24 v3, 528, v3\nv_add_u32 v2, v2, v3\nv_and_b32 v3, 3, v1\nv_lshl_add_u32 v2, v3, 2, v2")
        a.e(f"v_mov_b32 v3, {VL}\nv_mov_b32 v14, 0")
        a.wait_lg('mx')
        a.e(f"v_and_b32 v42, 0x7f800000, v42\nv_and_b32 v43, 0x7f800000, v43\nv_max_u32 v42, {15<<23:#x}, v42\nv_max_u32 v43, {15<<23:#x}, v43")
        a.e(f"v_sub_u32 v44, {(268<<23)&0xffffffff:#x}, v42\nv_sub_u32 v45, {(267<<23)&0xffffffff:#x}, v43")
        a.e(f"v_subrev_u32 v30, {14<<23:#x}, v42\nv_subrev_u32 v31, {13<<23:#x}, v43")
        a.e(f"s_cmp_eq_u32 s{S_WAVE}, 3\ns_cbranch_scc1 L_p3w3")
        a.e(f"v_add_u32 v8, {FX}, v2\nv_add_u32 v9, {FY}, v2")
        a.e("v_cmp_gt_u32 vcc, 176, v1\ns_nop 1\nv_cndmask_b32 v8, v3, v8, vcc\nv_cndmask_b32 v9, v3, v9, vcc")
        def emitw(src, sc, addr):
            for i in range(32):
                if i < 26:
                    r = src + 2 * i
                    a.e(f"v_mul_f32 v{r}, v{sc}, v{r}\nv_mul_f32 v{r+1}, v{sc}, v{r+1}\nv_cvt_pk_f16_f32 v{r}, v{r}, v{r+1}")
                a.lds(f"ds_write_b32 v{addr}, v{src+2*i if i < 26 else 14} offset:{16*i}", 'fw')
        gather(36, 26 * CPITCH, 128, False, 'yg')
        emitw(XG, 44, 8)
        emitw(128, 45, 9)
        a.e("s_branch L_p3done")
        a.label("L_p3w3")
        a.lg = []
        srd(a, SRD_DBG, S_DBG, 256)
        a.e(f"s_lshl_b32 s{S_T0}, s2, 2\nv_mov_b32 v8, s{S_T0}\nv_mov_b32 v9, 1\ns_mov_b64 exec, 1")
        a.e(f"buffer_store_dword v9, v8, {sr(SRD_DBG)}, 0 offen sc1")
        a.e("s_mov_b64 exec, -1")
        a.e(f"v_add_u32 v9, {FY - 2*FP}, v2\nv_cmp_gt_u32 vcc, 208, v1\ns_nop 1\nv_cndmask_b32 v9, v3, v9, vcc\nv_cmp_ne_u32 vcc, 203, v1\ns_nop 1\nv_cndmask_b32 v9, v3, v9, vcc")
        gather(36, 26 * CPITCH, 128, False, 'yl')
        for i in range(32):
            if i < 26: a.e(f"v_cvt_pk_bf16_f32 v{128+2*i}, v{128+2*i}, v{129+2*i}")
            a.lds(f"ds_write_b32 v9, v{128+2*i if i < 26 else 14} offset:{16*i}", 'fw')
        a.e(f"v_lshlrev_b32 v2, 4, v0\nv_add_u32 v2, {FY + 23*FP + 12}, v2\ns_mov_b32 exec_hi, 0")
        a.e("ds_write_b32 v2, v23")
        a.e("s_mov_b64 exec, -1")
        a.label("L_p3done")
        a.wait_lg0()
        a.e("s_barrier")
        self.stamp()
        a.e(f"v_and_b32 v8, 31, v0\nv_lshrrev_b32 v9, 5, v0\nv_mul_u32_u24 v2, 528, v9\nv_lshl_add_u32 v2, v8, 4, v2\nv_add_u32 v2, {FX}, v2")
        AX = lambda s: ar(4 * s)
        AY = lambda s: ar(88 + 4 * s)
        AD = {2: 10, -6: 11, 1: 12, -1: 13}
        a.e(f"v_lshlrev_b32 v3, 1, v8\nv_add_u32 v3, s{S_XB}, v3")
        for dlt, r in AD.items():
            a.e(f"v_mul_i32_i24 v{r}, {dlt*64}, v9\nv_add_u32 v{r}, v{r}, v3")
        R = 32
        H = [64, 80]
        BF = [96, 100]; BL = 104
        Q = [[112, 113], [114, 115]]
        TM = 116
        ACC = [[128, 144, 160], [176, 192, 208]]
        V_PA, V_S = 14, 15
        a.e(f"s_lshl_b32 s{S_T0}, s{S_WAVE}, 8\nv_lshlrev_b32 v{V_PA}, 2, v0\nv_add_u32 v{V_PA}, s{S_T0}, v{V_PA}")
        for i in range(26): a.e(f"v_mov_b32 v{R+i}, 0")
        a.e(f"v_mov_b32 v{BL+7}, 0x3f80")
        def rreads(par):
            return [f"ds_read_u16_d16_hi v{R+r}, v{AD[sigma(r)-r]} offset:{par*2048 + r*64}" for r in range(26)]
        def conv(par):
            ops = []
            m0, m1 = TM, TM + 1
            ops.append(f"v_max3_f32 v{m0}, |v{R}|, |v{R+1}|, |v{R+2}|")
            ops.append(f"v_max3_f32 v{m1}, |v{R+3}|, |v{R+4}|, |v{R+5}|")
            for i in range(6, 26, 2):
                m = m0 if (i // 2) % 2 else m1
                ops.append(f"v_max3_f32 v{m}, |v{R+i}|, |v{R+i+1}|, v{m}")
            ops.append(f"v_max_f32 v{m0}, v{m0}, v{m1}")
            ops.append(f"v_and_b32 v{m0}, 0x7f800000, v{m0}")
            ops.append(f"v_max_u32 v{m0}, {7<<23:#x}, v{m0}")
            ops.append(f"v_sub_u32 v{m1}, {(260<<23)&0xffffffff:#x}, v{m0}")
            ops.append(f"v_subrev_u32 v{m0}, {6<<23:#x}, v{m0}")
            for k in range(6):
                ops.append(f"v_cvt_pk_bf16_f32 v{BL+k}, v{R+lin[2*k]}, v{R+lin[2*k+1]}")
            ops.append(f"v_cvt_pk_bf16_f32 v{BL+6}, v{R+lin[12]}, 0")
            ops.append(f"v_mul_f32 v{m0}, v{m0}, v{m0}")
            ops.append(f"v_mul_f32 v{Q[par][0]}, v{m0}, v30")
            ops.append(f"v_mul_f32 v{Q[par][1]}, v{m0}, v31")
            for k in range(13):
                ops.append(f"v_mul_f32 v{TM+2+2*(k%2)}, v{m1}, v{R+2*k}")
                ops.append(f"v_mul_f32 v{TM+3+2*(k%2)}, v{m1}, v{R+2*k+1}")
                ops.append(f"v_cvt_pk_f16_f32 v{H[par]+k}, v{TM+2+2*(k%2)}, v{TM+3+2*(k%2)}")
            return ops
        def fragops(par, f):
            ops = []
            h = H[par]
            for k in range(4):
                (x0, y0), (x1, y1) = slots[8 * f + 2 * k], slots[8 * f + 2 * k + 1]
                d = BF[f % 2] + k
                if x0 // 2 == x1 // 2 and y0 // 2 == y1 // 2:
                    ops.append([f"v_pk_mul_f16 v{d}, v{h+x0//2}, v{h+y0//2} op_sel:[{x0&1},{y0&1}] op_sel_hi:[{x1&1},{y1&1}]"])
                else:
                    ops.append([f"v_fma_mixlo_f16 v{d}, v{h+x0//2}, v{h+y0//2}, 0 op_sel:[{x0&1},{y0&1},0] op_sel_hi:[1,1,0]",
                                "s_nop 0",
                                f"v_fma_mixhi_f16 v{d}, v{h+x1//2}, v{h+y1//2}, 0 op_sel:[{x1&1},{y1&1},0] op_sel_hi:[1,1,0]"])
            return ops
        a.e("s_waitcnt vmcnt(0)")
        rr = rreads(0)
        for op in rr[:13]: a.e(op)
        a.e("s_waitcnt lgkmcnt(0)")
        for op in rr[13:]: a.e(op)
        a.e("s_waitcnt lgkmcnt(0)")
        order = [44, 45] + [x for s_ in range(22) for x in (s_, 22 + s_)]
        cv = conv(0)
        for n_, f in enumerate(order):
            a.lds(f"ds_read_b128 {ar(4*f)}, v2 offset:{f*FP}", 'fr')
            for op in cv[2 * n_: 2 * n_ + 2]: a.e(op)
        for grp in fragops(0, 0)[:2]:
            for op in grp: a.e(op)
        a.wait_lg0()
        a.e(f"s_mov_b32 s{S_CNT}, 0")
        self.stamp()
        a.label("L_cloop")
        def finish_ops(par):
            X, Y, L = ACC[par]
            ops = []
            for i in range(16):
                ops.append(f"v_fmac_f32 v{L+i}, v{Y+i}, v{Q[par][1]}")
                if i >= 1:
                    ops.append(f"v_mul_f32 v{V_S}, v{X}, v{L}" if i == 1 else f"v_fmac_f32 v{V_S}, v{X+i-1}, v{L+i-1}")
            ops.append(f"v_fmac_f32 v{V_S}, v{X+15}, v{L+15}")
            ops.append(f"v_mul_f32 v{V_S}, v{V_S}, v{Q[par][0]}")
            ops.append(f"ds_write_b32 v{V_PA}, v{V_S}")
            ops.append(f"v_add_u32 v{V_PA}, 1024, v{V_PA}")
            return ops
        def cost(op):
            m = op.split()[0]
            if m.startswith('v_fma_mix'): return 8
            if m in ('v_mul_f32', 'v_fmac_f32', 'v_max_f32') or m.startswith('s_'): return 4
            return 5
        for par in range(2):
            X, Y, L = ACC[par]
            ex = []
            ex.append((0, "s_waitcnt vmcnt(2)"))
            for u in range(2):
                ex.append((0, f"buffer_load_dword v{IDXR[1-par][u]}, v{V_IO}, {sr(SRD_IDX)}, s{S_IO} offen offset:{64*u}"))
            ex.append((0, f"s_add_u32 s{S_IO}, s{S_IO}, 104"))
            for u in range(2):
                ex.append((0, f"s_add_u32 m0, s{S_XB}, {par*2048 + u*1024}"))
                ex.append((0, f"v_lshl_add_u32 v{IDXR[par][u]}, v{IDXR[par][u]}, 8, v{V_XL}"))
                ex.append((0, f"buffer_load_dwordx4 v{IDXR[par][u]}, {sr(SRD_TAB)}, 0 offen lds"))
            for op in finish_ops(1 - par): ex.append((3, op))
            ex.append((10, "s_waitcnt vmcnt(4)"))
            for r, op in enumerate(rreads(1 - par)):
                ex.append((10, op))
                if r in (11, 20): ex.append((10, "s_waitcnt lgkmcnt(4)"))
            ex.append((10, "s_waitcnt lgkmcnt(0)"))
            for op in conv(1 - par): ex.append((10, op))
            total = sum(cost(op) for _, op in ex)
            spent = 0
            for k in range(46):
                if k < 2:
                    a.e(f"v_mfma_f32_32x32x16_bf16 {vr(L,16)}, {AY(22+k)}, {vr(BL+4*k)}, {'0' if k == 0 else vr(L,16)}")
                else:
                    f = (k - 2) // 2
                    D, W = (X, AX(f)) if k % 2 == 0 else (Y, AY(f))
                    a.e(f"v_mfma_f32_32x32x16_f16 {vr(D,16)}, {W}, {vr(BF[f%2])}, {'0' if f == 0 else vr(D,16)}")
                f = (k + 1) // 2
                if k == 45: fo = fragops(1 - par, 0)[:2]
                elif f < 22: fo = fragops(par, f)[:2] if k % 2 == 1 else fragops(par, f)[2:]
                else: fo = []
                if k < 45:
                    for grp in fo:
                        for op in grp: a.e(op)
                target = total * (k + 1) / 45.0
                while ex and ex[0][0] <= k and (spent + cost(ex[0][1]) / 2 <= target or k >= 44):
                    _, op = ex.pop(0); a.e(op); spent += cost(op)
                if k == 45:
                    for grp in fo:
                        for op in grp: a.e(op)
            assert not ex
        a.e(f"s_add_u32 s{S_CNT}, s{S_CNT}, 1\ns_cmp_lt_u32 s{S_CNT}, 11\ns_cbranch_scc1 L_cloop")
        a.e("s_nop 7\ns_nop 3")
        for op in finish_ops(1): a.e(op)
        a.e("s_waitcnt vmcnt(0) lgkmcnt(0)")
        a.e("s_barrier")
        self.stamp()
        a.e("v_and_b32 v2, 31, v1\nv_lshrrev_b32 v3, 5, v1\nv_min_u32 v8, 21, v2\nv_lshlrev_b32 v8, 10, v8\nv_lshl_add_u32 v8, v3, 7, v8")
        for i in range(8): a.e(f"ds_read_b128 {vr(32+4*i)}, v8 offset:{1024+16*i}")
        a.e(f"s_load_dword s17, s[{S_BO}:{S_BO+1}], 0")
        srd(a, SRD_OUT, S_OUT, 2048)
        a.e("s_waitcnt lgkmcnt(0)")
        for st in (16, 8, 4, 2, 1):
            for i in range(st): a.e(f"v_add_f32 v{32+i}, v{32+i}, v{32+st+i}")
        a.e("s_mov_b64 exec, s[76:77]")
        a.e(f"v_mov_b32 v70, 0\nv_mov_b32 v71, 1\ns_mov_b32 s{S_CNT}, 0")
        a.label("L_poll")
        for k in range(3):
            a.e(f"s_mov_b32 s{S_T0}, {k*65536}")
            a.e(f"buffer_load_dwordx2 v[{64+2*k}:{65+2*k}], v{V_G}, {sr(SRD_WS)}, s{S_T0} offen sc1")
        a.e(f"s_cmp_lg_u32 s{S_WAVE}, 0\ns_cbranch_scc1 L_poll3")
        a.e(f"s_mov_b32 s{S_T0}, {3*65536}")
        a.e(f"buffer_load_dwordx2 v[70:71], v{V_G}, {sr(SRD_WS)}, s{S_T0} offen sc1")
        a.label("L_poll3")
        a.e("s_waitcnt vmcnt(0)")
        a.e("v_and_b32 v72, v65, v67\nv_and_b32 v73, v69, v71\nv_and_b32 v72, v72, v73\nv_cmp_ne_u32 vcc, 1, v72")
        a.e(f"s_cbranch_vccz L_polldone\ns_sleep 2\ns_add_u32 s{S_CNT}, s{S_CNT}, 1\ns_cmp_lt_u32 s{S_CNT}, 20000\ns_cbranch_scc1 L_poll")
        a.label("L_polldone")
        a.e("v_add_f32 v64, v64, v66\nv_add_f32 v68, v68, v70\nv_add_f32 v64, v64, v68\nv_add_f32 v32, v32, v64")
        a.e("s_mov_b64 exec, -1")
        a.e("v_lshlrev_b32 v8, 2, v1\nds_write_b32 v8, v32 offset:32768\ns_waitcnt lgkmcnt(0)\ns_barrier")
        a.e(f"s_cmp_lg_u32 s{S_WAVE}, 0\ns_cbranch_scc1 L_cend")
        a.e("v_lshlrev_b32 v8, 2, v2")
        for i in range(8): a.e(f"ds_read_b32 v{32+i}, v8 offset:{32768+128*i}")
        a.e("s_lshl_b32 s17, s17, 16\ns_waitcnt lgkmcnt(0)")
        for st in (4, 2, 1):
            for i in range(st): a.e(f"v_add_f32 v{32+i}, v{32+i}, v{32+st+i}")
        a.e("v_add_f32 v32, s17, v32\nv_cvt_pk_bf16_f32 v32, v32, v32")
        a.e(f"v_add_u32 v8, s{S_R0}, v0\nv_lshlrev_b32 v8, 1, v8\nv_cmp_gt_u32 vcc, s{S_N}, v0\ns_and_b64 exec, exec, vcc")
        a.e(f"buffer_store_short v32, v8, {sr(SRD_OUT)}, 0 offen")
        a.e("s_mov_b64 exec, -1")
        a.label("L_cend")
        self.stamp()
        a.e(f"s_mov_b32 s{SRD_WS+2}, 0x1000000")
        self.dump_stamps()
        a.label("L_end")
        a.e("s_endpgm")
        from cinplan import table
        a.L.append(".p2align 6")
        a.L.append(".type L_tab,@object")
        a.label("L_tab")
        for row in table():
            a.L.append("    .long " + ", ".join(f"{x:#x}" for x in row))

    def run(self):
        self.header(); self.entry(); self.gemm(); self.cin()
        self.a.L.append(".fill 5200, 4, 0")
        self.footer()
        return self.a.text()

if __name__ == '__main__':
    ap = argparse.ArgumentParser()
    ap.add_argument('-o', default='out.s')
    ap.add_argument('--stamps', action='store_true')
    ap.add_argument('--map', default='2x4')
    ap.add_argument('--order', default='lock')
    ap.add_argument('--pk', action='store_true')
    ap.add_argument('--wflag', default='')
    ap.add_argument('--xflag', default='')
    ap.add_argument('--noW', action='store_true')
    ap.add_argument('--noX', action='store_true')
    ap.add_argument('--noM', action='store_true')
    o = ap.parse_args()
    open(o.o, 'w').write(Gen(o).run())
```
